```python
import torch

def _softmax(x, axis=-1):
    return torch.softmax(x, dim=axis)
def _gelu(x):
    return torch.nn.functional.gelu(x, approximate="tanh")
def _silu(x):
    return torch.nn.functional.silu(x)
def _sigmoid(x):
    return torch.sigmoid(x)
def _layernorm(x, axis=-1, eps=1e-5):
    m = x.mean(dim=axis, keepdim=True)
    v = x.var(dim=axis, keepdim=True, unbiased=False)
    return (x - m) / torch.sqrt(v + eps)
def _scatter_add(tgt, idx, src, axis=0):
    return tgt.clone().index_add_(axis, idx, src)
def _segment_sum(src, seg, n):
    out = torch.zeros((n,) + src.shape[1:], dtype=src.dtype)
    return out.index_add_(0, seg, src)
def _pad(x, pw):
    flat = tuple(v for pair in reversed(pw) for v in pair)
    return torch.nn.functional.pad(x, flat)

kernel_name = 'recurrent_scan__sliding_block_cached__mixer_channel_mlp__decode'

def setup_inputs():

    _w = (lambda a: (lambda t: t.to(torch.bfloat16) if t.is_floating_point() else t)(torch.as_tensor(a)))
    def _A_setup():
        B, Sq, D = 1, 1, 512
        Hq, Hkv, Sk, Dh = 32, 32, 32768, 128
        assert Hq % Hkv == 0, (Hq, Hkv)
        return {
            "x": _w((lambda *s: torch.randn(*s, dtype=torch.bfloat16) * 0.1)(B, Sq, D)),
            "k_cache": _w((lambda *s: torch.randn(*s, dtype=torch.bfloat16) * 0.8)(B, Hkv, Sk, Dh)),
            "v_cache": _w((lambda *s: torch.randn(*s, dtype=torch.bfloat16) * 3.2)(B, Hkv, Sk, Dh)),
            "wq": _w((lambda *s: torch.randn(*s, dtype=torch.bfloat16) * 0.8)(D, Hq * Dh) * (D ** -0.5)),
            "wo": _w((lambda *s: torch.randn(*s, dtype=torch.bfloat16) * 3.2)(Hq * Dh, D) * ((Hq * Dh) ** -0.5)),
        }
    _A_in = _A_setup()

    def _B_setup():
        B, S, D, F = 1, 1, 512, 1376
        return {
            "x": _w((lambda *s: torch.randn(*s, dtype=torch.bfloat16) * 0.1)(B, S, D)),
            "w1": _w((lambda *s: torch.randn(*s, dtype=torch.bfloat16) * 3.2)(D, F) * (D ** -0.5)),
            "b1": _w((lambda *s: torch.randn(*s, dtype=torch.bfloat16) * 3.2)(F)),
            "w2": _w((lambda *s: torch.randn(*s, dtype=torch.bfloat16) * 3.2)(F, D) * (F ** -0.5)),
            "b2": _w((lambda *s: torch.randn(*s, dtype=torch.bfloat16) * 3.2)(D)),
        }
    _B_in = _B_setup()

    return {
        "A_x": _A_in["x"],
        "A_k_cache": _A_in["k_cache"],
        "A_v_cache": _A_in["v_cache"],
        "A_wq": _A_in["wq"],
        "A_wo": _A_in["wo"],
        "B_x": _B_in["x"],
        "B_w1": _B_in["w1"],
        "B_b1": _B_in["b1"],
        "B_w2": _B_in["w2"],
        "B_b2": _B_in["b2"],
    }

def reference(A_x, A_k_cache, A_v_cache, A_wq, A_wo, B_x, B_w1, B_b1, B_w2, B_b2):
    def _A_ref(x, k_cache, v_cache, wq, wo):
        B, Sq, D = x.shape
        Hq, Dh = 32, 128
        Hkv, Sk = k_cache.shape[1], k_cache.shape[2]
        W = min(4096, max(256, Sk // 4))
        rep = Hq // Hkv
        q = (lambda x, *d: x.permute(*d))((x @ wq).reshape(B, Sq, Hq, Dh), 0, 2, 1, 3)
        k = (lambda x, n, axis: torch.repeat_interleave(x, n, dim=axis))(k_cache[:, :, Sk - W:, :], rep, axis=1)
        v = (lambda x, n, axis: torch.repeat_interleave(x, n, dim=axis))(v_cache[:, :, Sk - W:, :], rep, axis=1)
        scores = torch.einsum("bhqd,bhkd->bhqk", q, k) * (Dh ** -0.5)
        p = _softmax(scores, axis=-1)
        o = torch.einsum("bhqk,bhkd->bhqd", p, v)
        return (lambda x, *d: x.permute(*d))(o, 0, 2, 1, 3).reshape(B, Sq, Hq * Dh) @ wo

    def _B_ref(x, w1, b1, w2, b2):
        y = _layernorm(x, axis=-1)
        h = _gelu(torch.einsum("bsd,df->bsf", y, w1) + b1)
        return torch.einsum("bsf,fd->bsd", h, w2) + b2

    x = A_x
    xn = _layernorm(x, axis=-1)
    s = _A_ref(xn, A_k_cache, A_v_cache, A_wq, A_wo)
    g = _silu(_B_ref(xn, B_w1, B_b1, B_w2, B_b2))
    return x + s * g
```

```python
NAME = "recurrent_scan__sliding_block_cached__mixer_channel_mlp__decode"
class Asm:
    def __init__(self):
        self.lines = []
    def __call__(self, s):
        for l in s.strip("\n").split("\n"):
            self.lines.append("    " + l.strip() if not l.strip().endswith(":") else l.strip())
    def label(self, n):
        self.lines.append(n + ":")
    def text(self):
        return "\n".join(self.lines) + "\n"

def wrap(body, grid, block, lds, vgpr=256, sgpr=96, accum=None, header=""):
    accum = accum or ((vgpr + 3) // 4 * 4)
    return f"""{header}; @launch grid=({grid},1,1) block=({block},1,1) lds={lds}
.amdgcn_target "amdgcn-amd-amdhsa--gfx950"
.text
.globl {NAME}_kernel
.p2align 8
.type {NAME}_kernel,@function
{NAME}_kernel:
{body}
.section .rodata,"a"
.p2align 6
.amdhsa_kernel {NAME}_kernel
  .amdhsa_next_free_vgpr {vgpr}
  .amdhsa_next_free_sgpr {sgpr}
  .amdhsa_accum_offset {accum}
  .amdhsa_group_segment_fixed_size 0
  .amdhsa_kernarg_size 104
  .amdhsa_user_sgpr_count 2
  .amdhsa_user_sgpr_kernarg_segment_ptr 1
  .amdhsa_system_sgpr_workgroup_id_x 1
.end_amdhsa_kernel
"""
```

```python
import re
TRANS = ("v_exp_f32", "v_log_f32", "v_rcp_f32", "v_rsq_f32", "v_sqrt_f32", "v_sin_f32", "v_cos_f32")
def regs(tok):
    tok = tok.strip()
    tok = re.sub(r"^-", "", tok)
    m = re.match(r"^abs\((.*)\)$", tok)
    if m: tok = m.group(1)
    m = re.match(r"^\|(.*)\|$", tok)
    if m: tok = m.group(1)
    m = re.match(r"^([vsa])(\d+)$", tok)
    if m: return {(m.group(1), int(m.group(2)))}
    m = re.match(r"^([vsa])\[(\d+):(\d+)\]$", tok)
    if m: return {(m.group(1), i) for i in range(int(m.group(2)), int(m.group(3)) + 1)}
    if tok == "vcc": return {("s", 106), ("s", 107)}
    if tok == "vcc_lo": return {("s", 106)}
    if tok == "vcc_hi": return {("s", 107)}
    if tok == "exec": return {("x", 0)}
    if tok == "m0": return {("m", 0)}
    return set()

class I:
    def __init__(self, line):
        self.line = line
        s = line.split(";")[0].strip()
        self.is_label = s.endswith(":") or s == "" or s.startswith(".")
        self.op = ""
        self.w = set(); self.r = set()
        if self.is_label: return
        parts = s.split(None, 1)
        self.op = op = parts[0]
        rest = parts[1] if len(parts) > 1 else ""
        ops = []; d = 0; cur = ""
        for ch in rest:
            if ch in "[(": d += 1
            if ch in "])": d -= 1
            if ch == "," and d == 0: ops.append(cur); cur = ""
            else: cur += ch
        ops.append(cur)
        last = ops[-1].strip().split()
        self.mods = " ".join(last[1:]) if len(last) > 1 else ""
        ops[-1] = last[0] if last else ""
        ops = [o.strip() for o in ops]
        self.ops = ops
        R = [regs(o) for o in ops]
        self.valu = op.startswith("v_")
        self.mfma = op.startswith("v_mfma")
        self.dot = op.startswith("v_dot")
        self.trans = any(op.startswith(t) for t in TRANS)
        self.dpp = "_dpp" in op or any(k in self.mods for k in ("row_", "quad_perm", "wave_"))
        self.perml = op.startswith("v_permlane")
        self.rdl = op.startswith("v_readlane") or op.startswith("v_readfirstlane")
        self.vmem = op.startswith("buffer_") or op.startswith("global_")
        self.ds = op.startswith("ds_")
        self.salu = op.startswith("s_")
        self.wide_store = self.vmem and "store" in op and ("x3" in op or "x4" in op)
        self.lds_dma = self.vmem and (" lds" in " " + self.mods or "load_lds" in op)
        if self.valu:
            if self.perml:
                self.w = R[0] | R[1]; self.r = R[0] | R[1]
            elif op.startswith("v_cmp"):
                self.w = set(R[0]); self.r = set().union(*R[1:])
                if op.startswith("v_cmpx"): self.w |= {("x", 0)}
            elif op.startswith(("v_add_co", "v_sub_co", "v_addc_co", "v_subb_co", "v_subrev_co")):
                self.w = R[0] | R[1]; self.r = set().union(*R[2:])
            else:
                self.w = set(R[0]); self.r = set().union(*R[1:]) if len(R) > 1 else set()
                if op.startswith(("v_fmac", "v_dot2c", "v_pk_fmac", "v_writelane")) or self.dpp or "sdwa" in op: self.r |= R[0]
            if self.mfma:
                self.srcc = R[3]; self.srcab = R[1] | R[2]
                self.passes = 8 if "32x32" in op else (8 if "16x16x4_f32" in op else 4)
        elif self.vmem:
            if "store" in op or ("atomic" in op):
                self.r = set().union(*R)
                self.data = R[0] if op.startswith("buffer_") else R[1]
                if "atomic" in op and "sc0" in self.mods: self.w = set(R[0])
            elif self.lds_dma:
                self.r = set().union(*R) | {("m", 0)}
            elif op in ("buffer_inv", "buffer_wbl2"):
                pass
            else:
                self.w = set(R[0]); self.r = set().union(*R[1:])
        elif self.ds:
            if op.startswith(("ds_read", "ds_bpermute", "ds_permute", "ds_swizzle")) or "_rtn" in op:
                self.w = set(R[0]); self.r = set().union(*R[1:])
            else:
                self.r = set().union(*R)
        elif self.salu:
            if op.startswith(("s_cmp", "s_cbranch", "s_branch", "s_waitcnt", "s_nop", "s_barrier", "s_sleep", "s_endpgm", "s_setprio", "s_bitcmp")):
                self.r = set().union(*R) if R else set()
            else:
                self.w = set(R[0]); self.r = set().union(*R[1:]) if len(R) > 1 else set()
                if "saveexec" in op: self.w |= {("x", 0)}
    def states(self):
        if self.is_label: return 0
        if self.op == "s_nop": return int(self.ops[0], 0) + 1
        return 1

def need(p, c):
    n = 0
    V = lambda s: {x for x in s if x[0] in "va"}
    S = lambda s: {x for x in s if x[0] == "s"}
    if p.valu:
        wv = V(p.w); ws = S(p.w)
        if p.mfma:
            ps = p.passes
            if c.mfma:
                if wv & c.srcab: n = max(n, {4: 8, 8: 12}[ps])
                if wv & c.srcc and not (c.srcc == wv and c.passes == ps): n = max(n, {4: 6, 8: 10}[ps])
                if (wv & V(c.w)) and not (c.srcc == wv and c.passes == ps): n = max(n, {4: 8, 8: 12}[ps])
            elif (c.valu or c.vmem or c.ds) and (wv & (c.r | c.w)): n = max(n, {4: 8, 8: 12}[ps])
            if c.valu and not c.mfma and (p.srcc & V(c.w)): n = max(n, {4: 3, 8: 7}[ps])
        else:
            if c.valu and c.mfma and (wv & c.r): n = max(n, 2)
            if c.valu and c.dpp and (wv & c.r): n = max(n, 2)
            if c.valu and c.perml and (wv & c.r): n = max(n, 2)
            if c.valu and c.rdl and (wv & c.r): n = max(n, 1)
            if p.trans and c.valu and not c.trans and (wv & c.r): n = max(n, 1)
            if p.dot and (c.valu or c.vmem or c.ds) and (wv & (c.r | c.w)):
                if c.op == p.op and not (wv & (regs(c.ops[1]) | regs(c.ops[2]))): pass
                else: n = max(n, 3)
            if ("sdwa" in p.op or "op_sel" in p.mods) and c.valu and (wv & (c.r | c.w)): n = max(n, 1)
        if ws:
            if c.valu and (ws & c.r): n = max(n, 4 if (c.rdl or c.op.startswith("v_writelane")) else 2)
            if c.vmem and (ws & c.r): n = max(n, 5)
            if c.salu and (ws & c.r): n = max(n, 1)
        if ("x", 0) in p.w:
            if c.valu and c.dpp: n = max(n, 5)
            if c.valu and (c.mfma or c.rdl or c.perml): n = max(n, 4)
    if p.salu and ("m", 0) in p.w and c.lds_dma: n = max(n, 1)
    if p.vmem and p.wide_store and (p.data & V(c.w)): n = max(n, 2)
    return n

def fix(text):
    out = []
    for line in text.split("\n"):
        c = I(line)
        if not c.is_label:
            if c.op.startswith(("s_cbranch_vcc",)): c.r |= regs("vcc")
            d = 0; pad = 0
            for p in reversed(out):
                if d >= 20: break
                if not p.is_label:
                    k = need(p, c)
                    if k > d: pad = max(pad, k - d)
                d += p.states()
            while pad > 0:
                k = min(pad, 16)
                out.append(I(f"    s_nop {k-1}"))
                pad -= k
        out.append(c)
    return "\n".join(i.line for i in out)
```

```python
import sys
from g import *
from haz import fix

QP, ST, HP, OP, TP, MP = 0x10000, 0x40000, 0x50000, 0x80000, 0x100000, 0x140000
WS_SIZE = 0x200000
L_XN, L_Y, L_Q, L_CNT, L_ST, L_O, L_WO = 0, 1024, 2048, 2304, 2560, 4096, 8192
LDS_SIZE = 8192 + 16384
LOG2E = 0x3fb8aa3b
SCALE = 0x3db504f3
DPPALL = "row_mask:0xf bank_mask:0xf"
SPIN_MAX = 400000

def gen(pad=0, diag=False, LA=8, QKPOS=27, rotm=5, kvflags=" nt", wflags=" nt"):
    a = Asm()
    NST = 8
    def stamp(k):
        if diag: a(f"s_memrealtime s[{64+2*k}:{65+2*k}]")
    def srd(d, base, size, off=None):
        if off is None:
            a(f"s_mov_b32 s{d}, s{base}"); a(f"s_mov_b32 s{d+1}, s{base+1}")
        else:
            a(f"s_add_u32 s{d}, s{base}, {off}"); a(f"s_addc_u32 s{d+1}, s{base+1}, 0")
        a(f"s_mov_b32 s{d+2}, {size}"); a(f"s_mov_b32 s{d+3}, 0x20000")
    def wave_red(op, v, t):
        for n in (8, 4, 2, 1):
            a(f"{op}_dpp v{v}, v{v}, v{v} row_ror:{n} {DPPALL}")
        a(f"v_mov_b32 v{t}, v{v}"); a(f"v_permlane16_swap_b32 v{v}, v{t}"); a(f"{op} v{v}, v{v}, v{t}")
        a(f"v_mov_b32 v{t}, v{v}"); a(f"v_permlane32_swap_b32 v{v}, v{t}"); a(f"{op} v{v}, v{v}, v{t}")
    def red8(op, v):
        a(f"{op}_dpp v{v}, v{v}, v{v} quad_perm:[1,0,3,2] {DPPALL}")
        a(f"{op}_dpp v{v}, v{v}, v{v} quad_perm:[2,3,0,1] {DPPALL}")
        a(f"{op}_dpp v{v}, v{v}, v{v} row_half_mirror {DPPALL}")
    def rnd(v):
        a(f"v_cvt_pk_bf16_f32 v{v}, v{v}, v{v}"); a(f"v_and_b32 v{v}, 0xffff0000, v{v}")
    def tag_from_epoch():
        a("s_mul_i32 s47, s46, 0x9e3779b1"); a("s_add_u32 s47, s47, 0x7f4a7c15")
    def unpack8(P, X):
        for k in range(4):
            a(f"v_lshlrev_b32 v{X+2*k}, 16, v{P+k}"); a(f"v_and_b32 v{X+2*k+1}, 0xffff0000, v{P+k}")
    def layernorm(X, P, T):
        a(f"v_add_f32 v{T}, v{X}, v{X+1}"); a(f"v_add_f32 v{T+1}, v{X+2}, v{X+3}")
        a(f"v_add_f32 v{T+2}, v{X+4}, v{X+5}"); a(f"v_add_f32 v{T+3}, v{X+6}, v{X+7}")
        a(f"v_add_f32 v{T}, v{T}, v{T+1}"); a(f"v_add_f32 v{T+2}, v{T+2}, v{T+3}"); a(f"v_add_f32 v{T}, v{T}, v{T+2}")
        wave_red("v_add_f32", T, T + 1)
        a(f"v_mul_f32 v{T}, 0x3b000000, v{T}")
        for k in range(8):
            a(f"v_sub_f32 v{T+4+k}, v{X+k}, v{T}")
        a(f"v_mul_f32 v{T+2}, v{T+4}, v{T+4}"); a(f"v_mul_f32 v{T+3}, v{T+5}, v{T+5}")
        for k in range(2, 8):
            a(f"v_fmac_f32 v{T+2+(k&1)}, v{T+4+k}, v{T+4+k}")
        a(f"v_add_f32 v{T+2}, v{T+2}, v{T+3}")
        wave_red("v_add_f32", T + 2, T + 1)
        a(f"v_mul_f32 v{T+2}, 0x3b000000, v{T+2}")
        rnd(T); rnd(T + 2)
        a(f"v_add_f32 v{T+2}, 0x3727c5ac, v{T+2}"); rnd(T + 2)
        a(f"v_sqrt_f32 v{T+2}, v{T+2}"); rnd(T + 2)
        a(f"v_rcp_f32 v{T+3}, v{T+2}")
        for k in range(8): a(f"v_sub_f32 v{X+k}, v{X+k}, v{T}")
        for k in range(4): a(f"v_cvt_pk_bf16_f32 v{P+k}, v{X+2*k}, v{X+2*k+1}")
        unpack8(P, X)
        for k in range(8): a(f"v_mul_f32 v{T+4+k}, v{X+k}, v{T+3}")
        for k in range(8): a(f"v_fma_f32 v{X+k}, -v{T+4+k}, v{T+2}, v{X+k}")
        for k in range(8): a(f"v_fma_f32 v{X+k}, v{X+k}, v{T+3}, v{T+4+k}")
        for k in range(4): a(f"v_cvt_pk_bf16_f32 v{P+k}, v{X+2*k}, v{X+2*k+1}")
        unpack8(P, X)
    def masks(M, bits, T):
        a(f"v_and_b32 v{T}, 1, v0"); a(f"v_lshlrev_b32 v{T}, 4, v{T}")
        a(f"v_mov_b32 v{T+1}, 0xffff"); a(f"v_lshlrev_b32 v{T}, v{T}, v{T+1}")
        a(f"v_and_b32 v{T+1}, {bits}, v0"); a(f"v_lshrrev_b32 v{T+1}, 1, v{T+1}")
        for w in range(4):
            a(f"v_cmp_eq_u32 vcc, {w}, v{T+1}"); a(f"v_cndmask_b32 v{M+w}, 0, v{T}, vcc")
    def quad_out(D, G):
        a(f"v_permlane32_swap_b32 v{D}, v{D+2}"); a(f"v_permlane32_swap_b32 v{D+1}, v{D+3}")
        a(f"v_add_f32_dpp v{G}, v{D+2}, v{D} row_ror:8 {DPPALL}")
        a(f"v_add_f32_dpp v{G+2}, v{D+3}, v{D+1} row_ror:8 {DPPALL}")
        a(f"v_mov_b32 v{G+1}, s47"); a(f"v_mov_b32 v{G+3}, s47")
    def pair_off(V, T):
        a(f"v_and_b32 v{V}, 7, v0"); a(f"v_lshlrev_b32 v{V}, 6, v{V}")
        a(f"v_and_b32 v{T}, 16, v0"); a(f"v_lshl_add_u32 v{V}, v{T}, 1, v{V}")
        a(f"v_and_b32 v{T}, 32, v0"); a(f"v_lshrrev_b32 v{T}, 1, v{T}"); a(f"v_add_u32 v{V}, v{V}, v{T}")
    def exec_n8():
        a("s_mov_b32 exec_lo, 0x00ff00ff"); a("s_mov_b32 exec_hi, 0x00ff00ff")
    def check_tags(regs_, acc, first=True):
        for i, r in enumerate(regs_):
            if first and i == 0: a(f"v_xor_b32 v{acc}, s47, v{r}")
            else: a(f"v_bitop3_b32 v{acc}, v{acc}, v{r}, s47 bitop3:0xf6")
    def poll(name, issue, tagregs, acc, sleep=1):
        a("s_mov_b32 s45, 0")
        a.label(f"L_{name}")
        issue()
        a("s_add_u32 s45, s45, 1")
        a("s_waitcnt vmcnt(0)")
        check_tags(tagregs, acc)
        a(f"v_cmp_ne_u32 vcc, 0, v{acc}")
        a(f"s_cbranch_vccz L_{name}_ok")
        if sleep: a(f"s_sleep {sleep}")
        a(f"s_cmp_lt_u32 s45, {SPIN_MAX}")
        a(f"s_cbranch_scc1 L_{name}")
        a.label(f"L_{name}_ok")
    def lds_spin(name, cnt_off, target, vaddr0, vtmp, extra=None):
        a("s_mov_b32 s45, 0")
        a.label(f"L_{name}")
        a(f"ds_read_b32 v{vtmp}, v{vaddr0} offset:{cnt_off}")
        if extra: extra()
        a("s_add_u32 s45, s45, 1")
        a("s_waitcnt lgkmcnt(0)")
        a(f"v_readfirstlane_b32 s44, v{vtmp}")
        a(f"s_cmp_ge_u32 s44, {target}")
        a(f"s_cbranch_scc1 L_{name}_ok")
        a("s_sleep 1")
        a(f"s_cmp_lt_u32 s45, {SPIN_MAX * 8}")
        a(f"s_cbranch_scc1 L_{name}")
        a.label(f"L_{name}_ok")

    if diag:
        for k in range(1, NST): a(f"s_mov_b32 s{64+2*k}, 0")
    stamp(0)
    if pad: a("s_memrealtime s[80:81]")
    a("s_cmp_ge_u32 s2, 256"); a("s_cbranch_scc1 L_end")
    a("s_load_dwordx16 s[4:19], s[0:1], 0")
    a("s_load_dwordx8 s[20:27], s[0:1], 64")
    a("s_load_dwordx2 s[28:29], s[0:1], 96")
    a("v_lshrrev_b32 v1, 6, v0"); a("v_and_b32 v0, 63, v0")
    a("v_readfirstlane_b32 s3, v1")
    a("s_and_b32 s30, s2, 7"); a("s_lshr_b32 s31, s2, 3"); a("s_and_b32 s44, s31, 3")
    a("s_lshl2_add_u32 s30, s30, s44")
    a("s_lshr_b32 s31, s31, 2")
    a("s_cmp_lt_u32 s3, 2"); a("s_cbranch_scc1 L_helper")

    K0, V0 = 40, 104
    a("s_sub_u32 s62, s3, 2")
    a("s_lshl_b32 s44, s30, 23"); a("s_lshl_b32 s45, s31, 17"); a("s_add_u32 s44, s44, s45"); a("s_add_u32 s44, s44, 0x700000")
    a(f"s_mul_i32 s45, s2, {rotm}")
    a("s_lshr_b32 s46, s45, 2"); a("s_add_u32 s46, s46, s62")
    for k in range(4):
        a(f"s_add_u32 s47, s46, {8*k}"); a("s_and_b32 s47, s47, 31"); a(f"s_lshl_b32 s{40+k}, s47, 12")
        a(f"s_add_u32 s47, s45, {k}"); a("s_and_b32 s47, s47, 3"); a("s_lshl_b32 s47, s47, 10")
        a(f"v_lshl_add_u32 v{2+k}, v0, 4, s47")
    a("s_waitcnt lgkmcnt(0)")
    srd(32, 6, 0x20000, "s44"); srd(36, 8, 0x20000, "s44")
    def load(n):
        if n < 32:
            t, i = (K0, n) if n < 16 else (V0, n - 16)
            s = "s[32:35]" if n < 16 else "s[36:39]"
            a(f"buffer_load_dwordx4 v[{t+4*i}:{t+4*i+3}], v{2+(i&3)}, {s}, s{40+(i>>2)} offen{kvflags}")
        else:
            e = n - 32
            a(f"s_add_u32 m0, s61, {e*1024}")
            a(f"buffer_load_dwordx4 v6, s[56:59], {'s60' if e else '0'} offen{wflags} lds")
    for n in range(LA): load(n)
    stamp(1)
    a("s_load_dword s46, s[28:29], 0")
    srd(52, 28, WS_SIZE)
    a("s_lshl_b32 s44, s30, 17"); a("s_lshl_b32 s45, s31, 7"); a("s_add_u32 s44, s44, s45")
    a("s_lshl_b32 s45, s62, 14"); a("s_add_u32 s44, s44, s45")
    srd(56, 12, 0x4000, "s44")
    a("s_mov_b32 s60, 8192")
    a("s_lshl_b32 s61, s62, 11"); a(f"s_add_u32 s61, s61, {L_WO}")
    a("s_and_b32 s44, s62, 2"); a("s_lshl_b32 s44, s44, 1")
    a("v_lshrrev_b32 v7, 3, v0"); a("v_and_b32 v6, 2, v7"); a("v_xor_b32 v6, s44, v6")
    a("v_and_b32 v8, 7, v0"); a("v_xor_b32 v6, v6, v8"); a("v_lshlrev_b32 v6, 4, v6")
    a("v_lshl_add_u32 v6, v7, 10, v6")
    masks(28, 15, 36)
    a("v_mov_b32 v1, 0")
    a("v_and_b32 v7, 15, v0"); a("v_lshlrev_b32 v7, 4, v7")
    a("s_mov_b32 s48, 0xcccccccc"); a("s_mov_b32 s49, 0xcccccccc"); a("s_mov_b32 s50, 0xaaaaaaaa"); a("s_mov_b32 s51, 0xaaaaaaaa")
    NL = 34
    issued = LA
    def issue_next(wait=True):
        nonlocal issued
        if issued < NL:
            if wait: a(f"s_waitcnt vmcnt({LA-1})")
            load(issued); issued += 1
    while issued <= QKPOS and issued < NL: issue_next()
    a(f"s_waitcnt vmcnt({min(issued - 16, 63)})")
    stamp(2)
    a("s_barrier")
    a(f"ds_read_b128 v[8:11], v7 offset:{L_Q}")
    a("s_waitcnt lgkmcnt(0)")
    stamp(3)
    tag_from_epoch()
    for w in range(4):
        for i in range(16):
            a(f"v_dot2_f32_bf16 v{12+i}, v{K0+4*i+w}, v{8+w}, {'v%d' % (12+i) if w else '0'}")
        if w in (1, 3): issue_next(False)
    for i in range(8):
        a(f"v_add_f32_dpp v{12+i}, v{12+i}, v{12+i} row_ror:8 row_mask:0xf bank_mask:0x3")
        a(f"v_add_f32_dpp v{12+i}, v{20+i}, v{20+i} row_ror:8 row_mask:0xf bank_mask:0xc")
    for i in range(4):
        a(f"v_add_f32_dpp v{12+i}, v{12+i}, v{12+i} row_half_mirror row_mask:0xf bank_mask:0x5")
        a(f"v_add_f32_dpp v{12+i}, v{16+i}, v{16+i} row_half_mirror row_mask:0xf bank_mask:0xa")
    for i in range(4):
        a(f"v_add_f32_dpp v{12+i}, v{12+i}, v{12+i} quad_perm:[2,3,0,1] {DPPALL}")
    a("v_cndmask_b32 v12, v12, v14, s[48:49]"); a("v_cndmask_b32 v13, v13, v15, s[48:49]")
    for i in range(2):
        a(f"v_add_f32_dpp v{12+i}, v{12+i}, v{12+i} quad_perm:[1,0,3,2] {DPPALL}")
    a("v_cndmask_b32 v12, v12, v13, s[50:51]")
    rnd(12); a(f"v_mul_f32 v12, {SCALE:#x}, v12"); rnd(12)
    a("v_mov_b32 v14, v12")
    wave_red("v_max_f32", 14, 13)
    a("v_sub_f32 v12, v12, v14"); a(f"v_mul_f32 v12, {LOG2E:#x}, v12"); a("v_exp_f32 v12, v12")
    a("v_mov_b32 v15, v12")
    a("v_cvt_pk_bf16_f32 v16, v12, v12")
    wave_red("v_add_f32", 15, 13)
    a("s_lshl_b32 s44, s62, 3"); a("v_mov_b32 v13, s44"); a("v_mov_b32 v17, 1")
    a("s_mov_b64 exec, 1")
    a(f"ds_write_b64 v13, v[14:15] offset:{L_ST}")
    a(f"ds_add_u32 v1, v17 offset:{L_CNT}")
    a("s_mov_b64 exec, -1")
    issue_next(False)
    for i in range(16):
        for w in range(4):
            a(f"v_and_b32_dpp v{K0+4*i+w}, v16, v{28+w} row_newbcast:{i} {DPPALL}")
    stamp(4)
    def pv(i):
        a(f"s_waitcnt vmcnt({issued - (16 + i) - 1})")
        a(f"v_mfma_f32_16x16x32_bf16 v[32:35], v[{K0+4*i}:{K0+4*i+3}], v[{V0+4*i}:{V0+4*i+3}], {'v[32:35]' if i else '0'}")
    for i in range(16):
        if i == 14:
            a("v_and_b32 v13, 7, v0"); a("v_lshlrev_b32 v13, 3, v13")
            lds_spin("mst", L_CNT, 8, 1, 18, extra=lambda: a(f"ds_read_b32 v19, v13 offset:{L_ST}"))
            red8("v_max_f32", 19)
            a("v_sub_f32 v19, v14, v19"); a(f"v_mul_f32 v19, {LOG2E:#x}, v19"); a("v_exp_f32 v19, v19")
            a("v_and_b32 v20, 15, v0"); a("v_lshlrev_b32 v20, 5, v20"); a("v_and_b32 v21, 16, v0"); a("v_add_u32 v20, v20, v21")
            a("s_lshl_b32 s44, s62, 9"); a("v_add_u32 v20, s44, v20")
            a("v_lshlrev_b32 v22, 3, v0")
            a("v_lshlrev_b32 v23, 4, v0")
            a("s_lshl_b32 s63, s30, 13"); a("s_lshl_b32 s44, s31, 10"); a("s_add_u32 s63, s63, s44"); a(f"s_add_u32 s63, s63, {OP}")
        pv(i)
        while issued < NL and issued - (16 + i) - 1 < LA: issue_next(False)
    assert issued == NL
    stamp(5)
    for r in range(4): a(f"v_mul_f32 v{32+r}, v{32+r}, v19")
    a("s_mov_b32 exec_hi, 0")
    a(f"ds_write_b128 v20, v[32:35] offset:{L_O}")
    a("s_mov_b64 exec, 1")
    a(f"ds_add_rtn_u32 v18, v1, v17 offset:{L_CNT+4}")
    a("s_mov_b64 exec, -1")
    a("s_waitcnt lgkmcnt(0)")
    a("v_readfirstlane_b32 s44, v18")
    a("s_cmp_eq_u32 s44, 7"); a("s_cbranch_scc1 L_reduce")
    a("s_waitcnt vmcnt(0)")
    a.label("L_main_fin")
    a("s_mov_b64 exec, 1")
    a(f"ds_add_u32 v1, v17 offset:{L_CNT+8}")
    a("s_branch L_fin")
    a.label("L_reduce")
    for w in range(8): a(f"ds_read_b64 v[{40+2*w}:{41+2*w}], v22 offset:{L_O + 512*w}")
    a("v_mov_b32 v33, s47"); a("v_mov_b32 v35, s47")
    a("s_waitcnt lgkmcnt(0)")
    for s in (4, 2, 1):
        for w in range(s):
            a(f"v_pk_add_f32 v[{40+2*w}:{41+2*w}], v[{40+2*w}:{41+2*w}], v[{40+2*(w+s)}:{41+2*(w+s)}]")
    a("v_mov_b32 v32, v40"); a("v_mov_b32 v34, v41")
    a("buffer_store_dwordx4 v[32:35], v23, s[52:55], s63 offen sc1")
    stamp(6)
    a("s_waitcnt vmcnt(1)")
    a("s_branch L_main_fin")

    a.label("L_helper")
    a("s_setprio 3")
    a("v_lshlrev_b32 v2, 4, v0")
    a("v_lshrrev_b32 v3, 3, v0")
    a("v_and_b32 v4, 7, v0")
    a("s_cmp_eq_u32 s3, 1"); a("s_cbranch_scc1 L_hm")
    a("v_lshlrev_b32 v5, 17, v3"); a("v_lshl_add_u32 v5, v4, 4, v5")
    a("s_lshr_b32 s48, s31, 1")
    a("s_lshl_b32 s44, s48, 20"); a("s_lshl_b32 s45, s30, 8"); a("s_add_u32 s44, s44, s45")
    a("s_and_b32 s45, s31, 1"); a("s_lshl_b32 s45, s45, 7"); a("s_add_u32 s44, s44, s45")
    a("s_waitcnt lgkmcnt(0)")
    srd(32, 4, 1024); srd(36, 10, 0x100000, "s44")
    a("buffer_load_dwordx4 v[8:11], v2, s[32:35], 0 offen")
    a("s_load_dword s46, s[28:29], 0")
    for i in range(16):
        a(f"s_mov_b32 s44, {i*8192}")
        a(f"buffer_load_dwordx4 v[{40+4*i}:{43+4*i}], v5, s[36:39], s44 offen{wflags}")
    srd(52, 28, WS_SIZE)
    masks(32, 7, 36)
    pair_off(6, 36)
    a("v_mov_b32 v1, 0"); a("v_mov_b32 v36, 0"); a("v_mov_b32 v37, 0"); a("v_mov_b32 v38, 0"); a("v_mov_b32 v39, 0")
    a(f"ds_write_b128 v1, v[36:39] offset:{L_CNT}")
    a("s_lshl_b32 s44, s48, 8"); a("v_lshl_add_u32 v7, v3, 5, s44")
    a("s_mov_b32 s50, 0x01000100"); a("s_mov_b32 s51, 0x03020302")
    a("s_waitcnt vmcnt(16)")
    stamp(1)
    unpack8(8, 12)
    layernorm(12, 8, 20)
    a(f"ds_write_b128 v2, v[8:11] offset:{L_XN}")
    a("s_waitcnt lgkmcnt(0)")
    a(f"ds_read_b128 v[12:15], v7 offset:{L_XN}"); a(f"ds_read_b128 v[16:19], v7 offset:{L_XN+16}")
    tag_from_epoch()
    a("s_lshl_b32 s49, s30, 12"); a(f"s_add_u32 s49, s49, {QP}")
    a("s_lshl_b32 s44, s31, 9"); a("s_add_u32 s48, s49, s44")
    a("s_waitcnt lgkmcnt(0)")
    stamp(2)
    for i in range(16):
        A = 20 + 4 * (i & 1)
        a(f"v_perm_b32 v28, v{12+(i>>1)}, v{12+(i>>1)}, s{50+(i&1)}")
        for w in range(4): a(f"v_and_b32 v{A+w}, v28, v{32+w}")
        a(f"s_waitcnt vmcnt({15-i})")
        a(f"v_mfma_f32_16x16x32_bf16 v[8:11], v[{A}:{A+3}], v[{40+4*i}:{43+4*i}], {'v[8:11]' if i else '0'}")
    quad_out(8, 12)
    exec_n8()
    a("buffer_store_dwordx4 v[12:15], v6, s[52:55], s48 offen sc1")
    a("s_mov_b64 exec, -1")
    stamp(3)
    def iss():
        for k in range(4): a(f"buffer_load_dwordx4 v[{40+4*k}:{43+4*k}], v2, s[52:55], s49 offen offset:{1024*k} sc1")
    poll("qp", iss, [41, 43, 45, 47, 49, 51, 53, 55], 16)
    a("v_add_f32 v40, v40, v44"); a("v_add_f32 v42, v42, v46"); a("v_add_f32 v48, v48, v52"); a("v_add_f32 v50, v50, v54")
    a("v_add_f32 v40, v40, v48"); a("v_add_f32 v42, v42, v50")
    a("v_cvt_pk_bf16_f32 v40, v40, v42")
    a("v_lshlrev_b32 v16, 2, v0")
    a(f"ds_write_b32 v16, v40 offset:{L_Q}")
    a("s_waitcnt lgkmcnt(0)")
    stamp(4)
    a("s_barrier")
    a("v_lshlrev_b32 v7, 3, v4")
    lds_spin("ost", L_CNT, 8, 1, 16, extra=lambda: a(f"ds_read_b64 v[8:9], v7 offset:{L_ST}"))
    a("v_mov_b32 v12, v8"); red8("v_max_f32", 12)
    a("v_sub_f32 v8, v8, v12"); a(f"v_mul_f32 v8, {LOG2E:#x}, v8"); a("v_exp_f32 v8, v8")
    a("v_mul_f32 v14, v8, v9"); red8("v_add_f32", 14)
    a("v_mov_b32 v13, s47"); a("v_mov_b32 v15, s47")
    a("s_lshl_b32 s49, s30, 7"); a(f"s_add_u32 s49, s49, {ST}")
    a("s_lshl_b32 s44, s31, 4"); a("s_add_u32 s48, s49, s44")
    a("s_mov_b64 exec, 1")
    a("buffer_store_dwordx4 v[12:15], v1, s[52:55], s48 offen sc1")
    a("s_mov_b64 exec, -1")
    a("v_lshlrev_b32 v7, 4, v4")
    poll("st", lambda: a("buffer_load_dwordx4 v[8:11], v7, s[52:55], s49 offen sc1"), [9, 11], 16, sleep=2)
    a("v_mov_b32 v12, v8"); red8("v_max_f32", 12)
    a("v_sub_f32 v8, v8, v12"); a(f"v_mul_f32 v8, {LOG2E:#x}, v8"); a("v_exp_f32 v8, v8")
    a("v_mul_f32 v14, v8, v10"); red8("v_add_f32", 14)
    a("v_rcp_f32 v14, v14"); a("v_mul_f32 v8, v8, v14")
    for k in range(8): a(f"v_readlane_b32 s{56+k}, v8, {k}")
    stamp(5)
    a("v_lshrrev_b32 v16, 4, v0")
    a("v_bfe_u32 v17, v0, 2, 2")
    a("v_lshlrev_b32 v18, 12, v16"); a("v_lshl_add_u32 v18, v17, 7, v18")
    a("v_and_b32 v19, 3, v0"); a("v_lshl_add_u32 v18, v19, 3, v18")
    a("v_lshrrev_b32 v17, 1, v17"); a("v_and_b32 v16, 1, v16"); a("v_lshl_or_b32 v17, v16, 1, v17")
    for t in range(4):
        a(f"v_xor_b32 v19, {t}, v17"); a(f"v_lshl_add_u32 v{20+t}, v19, 5, v18")
    a("s_lshl_b32 s49, s30, 13"); a(f"s_add_u32 s49, s49, {OP}"); a("s_add_u32 s50, s49, 4096")
    a("s_lshl_b32 s48, s31, 14"); a("s_lshl_b32 s44, s30, 9"); a("s_add_u32 s48, s48, s44"); a(f"s_add_u32 s48, s48, {TP}")
    a("v_lshlrev_b32 v6, 3, v0")
    lds_spin("wo", L_CNT + 8, 8, 1, 16)
    B0 = 72
    def iss_op():
        for k in range(8):
            a(f"buffer_load_dwordx4 v[{40+4*k}:{43+4*k}], v2, s[52:55], s{49+(k>>2)} offen offset:{1024*(k&3)} sc1")
    iss_op()
    for s in range(4):
        for t in range(4):
            for h in range(2):
                r = B0 + 16 * s + 4 * t + 2 * h
                a(f"ds_read_b64_tr_b16 v[{r}:{r+1}], v{20+t} offset:{L_WO + (8*s+4*h)*128}")
    a("s_mov_b32 s45, 0")
    a("s_branch L_op_chk")
    a.label("L_op")
    iss_op()
    a.label("L_op_chk")
    a("s_add_u32 s45, s45, 1")
    for k in range(8):
        a(f"s_waitcnt vmcnt({7-k})")
        check_tags([41 + 4 * k, 43 + 4 * k], 16, first=(k == 0))
        if k == 0:
            a("v_mul_f32 v8, s56, v40"); a("v_mul_f32 v9, s56, v42")
        else:
            a(f"v_fmac_f32 v8, s{56+k}, v{40+4*k}"); a(f"v_fmac_f32 v9, s{56+k}, v{42+4*k}")
    a("v_cmp_ne_u32 vcc, 0, v16")
    a("s_cbranch_vccz L_op_ok")
    a(f"s_cmp_lt_u32 s45, {SPIN_MAX}")
    a("s_cbranch_scc1 L_op")
    a.label("L_op_ok")
    stamp(6)
    a("v_cvt_pk_bf16_f32 v8, v8, v9")
    a("s_waitcnt lgkmcnt(0)")
    for s in range(4):
        for w in range(4):
            a(f"v_mov_b32_dpp v{40+4*s+w}, v8 row_newbcast:{4*s+w} {DPPALL}")
    for s in range(4):
        for t in range(4):
            r = B0 + 16 * s + 4 * t
            a(f"v_mfma_f32_16x16x32_bf16 v[{24+4*t}:{27+4*t}], v[{40+4*s}:{43+4*s}], v[{r}:{r+3}], {'v[%d:%d]' % (24+4*t, 27+4*t) if s else '0'}")
    a("v_mov_b32 v25, s47")
    for t in range(1, 4):
        a(f"v_mov_b32_dpp v24, v{24+4*t} quad_perm:[0,1,2,3] row_mask:{1<<t:#x} bank_mask:0xf")
    a("buffer_store_dwordx2 v[24:25], v6, s[52:55], s48 offen sc1")
    stamp(7)
    a("s_branch L_fin")

    a.label("L_hm")
    a("s_mul_i32 s48, s2, 1525"); a("s_lshr_b32 s48, s48, 16")
    a("s_mul_i32 s44, s48, 43"); a("s_sub_u32 s49, s2, s44")
    a(f"s_mul_i32 s44, s48, {64*5504}"); a("s_lshl_b32 s45, s49, 7"); a("s_add_u32 s44, s44, s45")
    a(f"v_mul_u32_u24 v5, {8*5504}, v3"); a("v_lshl_add_u32 v5, v4, 4, v5")
    a("v_add_u32 v5, s44, v5")
    a("s_waitcnt lgkmcnt(0)")
    srd(32, 4, 1024); srd(36, 16, 512 * 2752)
    a("buffer_load_dwordx4 v[8:11], v2, s[32:35], 0 offen")
    a("s_load_dword s46, s[28:29], 0")
    for i in range(8):
        a(f"s_mov_b32 s44, {i*5504}")
        a(f"buffer_load_dwordx4 v[{40+4*i}:{43+4*i}], v5, s[36:39], s44 offen{wflags}")
    srd(52, 28, WS_SIZE)
    masks(32, 7, 36)
    pair_off(6, 36)
    a("s_waitcnt lgkmcnt(0)")
    tag_from_epoch()
    a("s_cmp_ge_u32 s2, 172"); a("s_cbranch_scc1 L_m1_done")
    a("s_lshl_b32 s44, s48, 8"); a("v_lshl_add_u32 v7, v3, 5, s44")
    a("s_lshl_b32 s44, s49, 6"); a("v_lshl_add_u32 v36, v4, 3, s44")
    a("v_mov_b32 v37, 16"); a("v_cmp_lt_u32 vcc, 1375, v36"); a("v_cndmask_b32 v37, 0, v37, vcc")
    a("s_waitcnt vmcnt(8)")
    unpack8(8, 12)
    layernorm(12, 8, 20)
    layernorm(12, 8, 20)
    a(f"ds_write_b128 v2, v[8:11] offset:{L_Y}")
    a("s_waitcnt lgkmcnt(0)")
    a(f"ds_read_b128 v[12:15], v7 offset:{L_Y}"); a(f"ds_read_b128 v[16:19], v7 offset:{L_Y+16}")
    a(f"s_mul_i32 s50, s48, {2752*8}"); a("s_lshl_b32 s44, s49, 9"); a("s_add_u32 s50, s50, s44"); a(f"s_add_u32 s50, s50, {HP}")
    a("s_waitcnt lgkmcnt(0)")
    for i in range(8):
        a(f"v_lshrrev_b32 v{12+i}, v37, v{12+i}")
        a(f"v_lshlrev_b32 v{72+i}, 16, v{12+i}")
        a(f"v_and_b32 v{12+i}, 0xffff, v{12+i}")
    for i in range(8):
        a(f"s_waitcnt vmcnt({7-i})")
        for k in range(8):
            y = (72 if k & 1 else 12) + i
            a(f"v_dot2_f32_bf16 v{20+k}, v{40+4*i+(k>>1)}, v{y}, {'v%d' % (20+k) if i else '0'}")
    for k in (0, 1, 4, 5):
        a(f"v_permlane32_swap_b32 v{20+k}, v{22+k}")
    for k in (0, 1, 4, 5):
        a(f"v_add_f32 v{20+k}, v{20+k}, v{22+k}")
    for k in (0, 1):
        a(f"v_permlane16_swap_b32 v{20+k}, v{24+k}")
    for k in (0, 1):
        a(f"v_add_f32 v{20+k}, v{20+k}, v{24+k}")
    a(f"v_add_f32_dpp v12, v20, v20 row_ror:8 {DPPALL}"); a(f"v_add_f32_dpp v14, v21, v21 row_ror:8 {DPPALL}")
    a("v_mov_b32 v13, s47"); a("v_mov_b32 v15, s47")
    exec_n8()
    a("buffer_store_dwordx4 v[12:15], v6, s[52:55], s50 offen sc1")
    a("s_mov_b64 exec, -1")
    a.label("L_m1_done")
    stamp(1)
    a("s_barrier")
    a("s_cmp_ge_u32 s30, 29"); a("s_cbranch_scc1 L_fin")
    srd(36, 20, 1376 * 1024); srd(40, 18, 2752)
    a("s_mul_i32 s48, s30, 48"); a("s_lshl_b32 s44, s48, 10"); a("s_lshl_b32 s45, s31, 7"); a("s_add_u32 s44, s44, s45")
    a("v_lshlrev_b32 v5, 11, v3"); a("v_lshl_add_u32 v5, v4, 4, v5"); a("v_add_u32 v5, s44, v5")
    for i in range(6):
        a(f"s_mov_b32 s44, {(i>>1)*16384}")
        a(f"buffer_load_dwordx4 v[{72+4*i}:{75+4*i}], v5, s[36:39], s44 offen offset:{(i&1)*1024}{wflags}")
    a("s_lshl_b32 s44, s48, 1"); a("v_lshl_add_u32 v7, v3, 2, s44")
    for t in range(3): a(f"buffer_load_dword v{28+t}, v7, s[40:43], 0 offen offset:{32*t}")
    a("v_mul_u32_u24 v7, 11008, v4"); a("v_lshl_add_u32 v7, v3, 4, v7")
    a("s_lshl_b32 s49, s48, 3"); a(f"s_add_u32 s49, s49, {HP}")
    a("s_cmp_eq_u32 s30, 28"); a("s_cselect_b32 s50, 1, 2"); a("s_lshl_b32 s50, s50, 7"); a("s_add_u32 s50, s50, s49")
    def iss_hp():
        a("buffer_load_dwordx4 v[40:43], v7, s[52:55], s49 offen sc1")
        a("buffer_load_dwordx4 v[44:47], v7, s[52:55], s49 offen offset:128 sc1")
        a("buffer_load_dwordx4 v[48:51], v7, s[52:55], s50 offen sc1")
    poll("hp", iss_hp, [41, 43, 45, 47, 49, 51], 16, sleep=4)
    stamp(2)
    hv = [40, 42, 44, 46, 48, 50]
    for op in ("quad_perm:[1,0,3,2]", "quad_perm:[2,3,0,1]", "row_half_mirror"):
        for v in hv: a(f"v_add_f32_dpp v{v}, v{v}, v{v} {op} {DPPALL}")
    for i, v in enumerate(hv):
        rnd(v)
        if i & 1: a(f"v_and_b32 v17, 0xffff0000, v{28+(i>>1)}")
        else: a(f"v_lshlrev_b32 v17, 16, v{28+(i>>1)}")
        a(f"v_add_f32 v{v}, v{v}, v17"); rnd(v)
        a(f"v_mul_f32 v17, v{v}, v{v}"); a(f"v_mul_f32 v17, v17, v{v}")
        a(f"v_mul_f32 v17, 0x3d372713, v17"); a(f"v_add_f32 v17, v17, v{v}")
        a(f"v_mul_f32 v17, 0xc0135761, v17")
        a("v_exp_f32 v17, v17"); a("v_add_f32 v17, 1.0, v17"); a("v_rcp_f32 v17, v17")
        a(f"v_mul_f32 v{v}, v{v}, v17")
        a(f"v_cvt_pk_bf16_f32 v{v}, v{v}, v{v}")
    for i, v in enumerate(hv):
        A = 20 + 4 * (i & 1)
        for w in range(4): a(f"v_and_b32 v{A+w}, v{v}, v{32+w}")
        a(f"v_mfma_f32_16x16x32_bf16 v[8:11], v[{A}:{A+3}], v[{72+4*i}:{75+4*i}], {'v[8:11]' if i else '0'}")
    quad_out(8, 12)
    a("s_lshl_b32 s48, s31, 14"); a("s_lshl_b32 s44, s30, 9"); a("s_add_u32 s49, s48, s44"); a(f"s_add_u32 s49, s49, {MP}")
    exec_n8()
    a("buffer_store_dwordx4 v[12:15], v6, s[52:55], s49 offen sc1")
    a("s_mov_b64 exec, -1")
    stamp(3)
    a("s_and_b32 s44, s30, 7"); a("s_cmp_lg_u32 s44, 0"); a("s_cbranch_scc1 L_fin")
    srd(36, 22, 1024); srd(40, 24, 1024)
    a("s_lshl_b32 s44, s30, 4"); a("s_add_u32 s48, s48, s44")
    a("s_lshl_b32 s44, s31, 7"); a("s_lshl_b32 s45, s30, 2"); a("s_add_u32 s44, s44, s45")
    a("v_bfe_u32 v5, v0, 4, 1"); a("v_lshlrev_b32 v5, 1, v5"); a("v_lshl_add_u32 v5, v4, 2, v5"); a("v_add_u32 v5, s44, v5")
    a("buffer_load_ushort v28, v5, s[32:35], 0 offen")
    a("buffer_load_ushort v29, v5, s[36:39], 0 offen")
    a("v_lshlrev_b32 v7, 9, v3"); a("v_lshl_add_u32 v7, v4, 4, v7")
    for k in range(4): a(f"s_add_u32 s{56+k}, s48, {MP + 4096*k}")
    a("v_mov_b32 v52, 0"); a("v_mov_b32 v53, s47"); a("v_mov_b32 v54, 0"); a("v_mov_b32 v55, s47")
    def iss4(masked):
        for k in range(4):
            if masked and k == 3: a("s_mov_b32 exec_hi, 0xff")
            a(f"buffer_load_dwordx4 v[{40+4*k}:{43+4*k}], v7, s[52:55], s{56+k} offen sc1")
        if masked: a("s_mov_b64 exec, -1")
    def sum4(dst):
        a("v_add_f32 v40, v40, v44"); a("v_add_f32 v42, v42, v46"); a("v_add_f32 v48, v48, v52"); a("v_add_f32 v50, v50, v54")
        a("v_add_f32 v40, v40, v48"); a("v_add_f32 v42, v42, v50")
        a(f"v_add_f32_dpp v40, v40, v40 row_ror:8 {DPPALL}"); a(f"v_add_f32_dpp v42, v42, v42 row_ror:8 {DPPALL}")
        a("v_permlane16_swap_b32 v40, v42"); a("v_add_f32 v40, v40, v42")
        a("v_mov_b32 v42, v40"); a("v_permlane32_swap_b32 v40, v42"); a(f"v_add_f32 v{dst}, v40, v42")
    tags8 = [41, 43, 45, 47, 49, 51, 53, 55]
    poll("mp", lambda: iss4(True), tags8, 16, sleep=4)
    sum4(30); rnd(30)
    a("v_lshlrev_b32 v29, 16, v29"); a("v_add_f32 v30, v30, v29"); rnd(30)
    a(f"v_mul_f32 v17, {LOG2E | 0x80000000:#x}, v30"); a("v_exp_f32 v17, v17"); a("v_add_f32 v17, 1.0, v17"); a("v_rcp_f32 v17, v17")
    a("v_mul_f32 v30, v30, v17"); rnd(30)
    a("v_lshlrev_b32 v28, 16, v28")
    for k in range(4): a(f"s_add_u32 s{56+k}, s48, {TP + 4096*k}")
    stamp(4)
    poll("tp", lambda: iss4(False), tags8, 16, sleep=0)
    stamp(5)
    sum4(31); rnd(31)
    a("v_mul_f32 v31, v31, v30"); rnd(31)
    a("v_add_f32 v31, v31, v28"); a("v_cvt_pk_bf16_f32 v31, v31, v31")
    a("s_mov_b64 exec, 0x00ff00ff")
    a("buffer_store_short v31, v5, s[40:43], 0 offen")
    stamp(6)
    a("s_cmp_lg_u32 s2, 0"); a("s_cbranch_scc1 L_fin")
    a("s_add_u32 s46, s46, 1"); a("v_mov_b32 v8, s46"); a("v_mov_b32 v9, 0")
    a("s_mov_b64 exec, 1")
    a("buffer_store_dword v8, v9, s[52:55], 0 offen sc1")
    if pad:
        a.label("L_pad")
        a("s_memrealtime s[82:83]")
        a("s_waitcnt lgkmcnt(0)")
        a("s_sub_u32 s84, s82, s80")
        a(f"s_cmp_lt_u32 s84, {pad}")
        a("s_cbranch_scc1 L_pad")
    a.label("L_fin")
    if diag:
        a("s_waitcnt lgkmcnt(0)")
        a("s_mov_b64 exec, 1")
        a("s_add_u32 s28, s28, 0x20000000"); a("s_addc_u32 s29, s29, 0"); a("s_mov_b32 s30, 0x100000"); a("s_mov_b32 s31, 0x20000")
        a("s_mul_i32 s44, s2, 10"); a("s_add_u32 s44, s44, s3"); a("s_lshl_b32 s44, s44, 6")
        for k in range(NST): a(f"v_mov_b32 v{8+k}, s{64+2*k}")
        a("v_mov_b32 v1, 0")
        a("buffer_store_dwordx4 v[8:11], v1, s[28:31], s44 offen")
        a("buffer_store_dwordx4 v[12:15], v1, s[28:31], s44 offen offset:16")
    a.label("L_end")
    a("s_endpgm")
    return wrap(fix(a.text()), 256, 640, LDS_SIZE, vgpr=168, sgpr=96)

if __name__ == "__main__":
    import struct, math
    f2h = lambda x: struct.unpack("<I", struct.pack("<f", x))[0]
    assert f2h(128 ** -0.5) == SCALE, hex(f2h(128 ** -0.5))
    assert f2h(math.log2(math.e)) == LOG2E
    assert f2h(1e-5) == 0x3727c5ac and f2h(1 / 512) == 0x3b000000
    assert f2h(0.044715) == 0x3d372713, hex(f2h(0.044715))
    assert f2h(-2 * math.sqrt(2 / math.pi) * math.log2(math.e)) == 0xc0135761, hex(f2h(-2 * math.sqrt(2 / math.pi) * math.log2(math.e)))
    assert all((w * 1525) >> 16 == w // 43 for w in range(256))
    open("dev/k1.s", "w").write(gen())
    open("dev/k1d.s", "w").write(gen(diag=True))
    open("dev/k1_pad60.s", "w").write(gen(pad=6000))
    open("dev/k1_nont.s", "w").write(gen(kvflags="", wflags=""))
    open("dev/k1_r0.s", "w").write(gen(rotm=0))
```

```python
import sys
from g import *
from haz import fix

QP, HP, OP, TP, MP = 0x10000, 0x50000, 0x80000, 0x100000, 0x140000
WS_SIZE = 0x200000
L_XN, L_Q, L_CNT, L_ST, L_O, L_WO, L_G = 0, 3072, 3328, 3584, 4096, 8192, 24576
L_QH = 3648 + 64
L_QH = L_O
C_ST, C_O, C_WO, C_Q, C_QH = (L_CNT + 4 * i for i in range(5))
G_INS = 1056
G_SET = 4 * G_INS
LOG2E = 0x3fb8aa3b
SCALE = 0x3db504f3
DPPALL = "row_mask:0xf bank_mask:0xf"
SPIN_MAX = 400000
PREF_N = 20
PREF_H = 6
MPWAIT = 8

def gen(pad=0, diag=False, QKPOS=23, rotm=5, kvflags=" nt", wflags=" nt", opdepth=2, tpdepth=3, first=2, abl=(), prio=True,
        qdepth=1, qgap=24, LA=0, pref=True, tlb=True, w2first=True, qfirst=48, wopos=None, opfirst=0, opgap=2):
    a = Asm()
    NST = 8
    LDS_SIZE = L_G + 2 * opdepth * G_SET
    def stamp(k):
        if diag: a(f"s_memrealtime s[{64+2*k}:{65+2*k}]")
    def srd(d, base, size, off=None):
        if off is None:
            a(f"s_mov_b32 s{d}, s{base}"); a(f"s_mov_b32 s{d+1}, s{base+1}")
        else:
            a(f"s_add_u32 s{d}, s{base}, {off}"); a(f"s_addc_u32 s{d+1}, s{base+1}, 0")
        a(f"s_mov_b32 s{d+2}, {size}"); a(f"s_mov_b32 s{d+3}, 0x20000")
    def wave_red(op, v, t):
        for n in (8, 4, 2, 1):
            a(f"{op}_dpp v{v}, v{v}, v{v} row_ror:{n} {DPPALL}")
        a(f"v_mov_b32 v{t}, v{v}"); a(f"v_permlane16_swap_b32 v{v}, v{t}"); a(f"{op} v{v}, v{v}, v{t}")
        a(f"v_mov_b32 v{t}, v{v}"); a(f"v_permlane32_swap_b32 v{v}, v{t}"); a(f"{op} v{v}, v{v}, v{t}")
    def red8(op, v):
        a(f"{op}_dpp v{v}, v{v}, v{v} quad_perm:[1,0,3,2] {DPPALL}")
        a(f"{op}_dpp v{v}, v{v}, v{v} quad_perm:[2,3,0,1] {DPPALL}")
        a(f"{op}_dpp v{v}, v{v}, v{v} row_half_mirror {DPPALL}")
    def rnd(v):
        a(f"v_cvt_pk_bf16_f32 v{v}, v{v}, v{v}"); a(f"v_and_b32 v{v}, 0xffff0000, v{v}")
    def tag_from_epoch():
        a("s_mul_i32 s47, s46, 0x9e3779b1"); a("s_add_u32 s47, s47, 0x7f4a7c15")
    def unpack8(P, X):
        for k in range(4):
            a(f"v_lshlrev_b32 v{X+2*k}, 16, v{P+k}"); a(f"v_and_b32 v{X+2*k+1}, 0xffff0000, v{P+k}")
    def layernorm(X, P, T):
        unpack8(P, X)
        a(f"v_add_f32 v{T}, v{X}, v{X+1}"); a(f"v_add_f32 v{T+1}, v{X+2}, v{X+3}")
        a(f"v_add_f32 v{T+2}, v{X+4}, v{X+5}"); a(f"v_add_f32 v{T+3}, v{X+6}, v{X+7}")
        a(f"v_add_f32 v{T}, v{T}, v{T+1}"); a(f"v_add_f32 v{T+2}, v{T+2}, v{T+3}"); a(f"v_add_f32 v{T}, v{T}, v{T+2}")
        wave_red("v_add_f32", T, T + 1)
        a(f"v_mul_f32 v{T}, 0x3b000000, v{T}")
        for k in range(8):
            a(f"v_sub_f32 v{T+4+k}, v{X+k}, v{T}")
        a(f"v_mul_f32 v{T+2}, v{T+4}, v{T+4}"); a(f"v_mul_f32 v{T+3}, v{T+5}, v{T+5}")
        for k in range(2, 8):
            a(f"v_fmac_f32 v{T+2+(k&1)}, v{T+4+k}, v{T+4+k}")
        a(f"v_add_f32 v{T+2}, v{T+2}, v{T+3}")
        rnd(T)
        wave_red("v_add_f32", T + 2, T + 1)
        a(f"v_mul_f32 v{T+2}, 0x3b000000, v{T+2}")
        rnd(T + 2)
        a(f"v_add_f32 v{T+2}, 0x3727c5ac, v{T+2}"); rnd(T + 2)
        a(f"v_sqrt_f32 v{T+2}, v{T+2}")
        for k in range(8): a(f"v_sub_f32 v{X+k}, v{X+k}, v{T}")
        rnd(T + 2)
        a(f"v_rcp_f32 v{T+3}, v{T+2}")
        for k in range(4): a(f"v_cvt_pk_bf16_f32 v{P+k}, v{X+2*k}, v{X+2*k+1}")
        unpack8(P, X)
        for k in range(8): a(f"v_mul_f32 v{T+4+k}, v{X+k}, v{T+3}")
        for k in range(8): a(f"v_fma_f32 v{X+k}, -v{T+4+k}, v{T+2}, v{X+k}")
        for k in range(8): a(f"v_fma_f32 v{X+k}, v{X+k}, v{T+3}, v{T+4+k}")
        for k in range(4): a(f"v_cvt_pk_bf16_f32 v{P+k}, v{X+2*k}, v{X+2*k+1}")
    def masks(M, bits, T):
        a(f"v_and_b32 v{T}, 1, v0"); a(f"v_lshlrev_b32 v{T}, 4, v{T}")
        a(f"v_mov_b32 v{T+1}, 0xffff"); a(f"v_lshlrev_b32 v{T}, v{T}, v{T+1}")
        a(f"v_and_b32 v{T+1}, {bits}, v0"); a(f"v_lshrrev_b32 v{T+1}, 1, v{T+1}")
        for w in range(4):
            a(f"v_cmp_eq_u32 vcc, {w}, v{T+1}"); a(f"v_cndmask_b32 v{M+w}, 0, v{T}, vcc")
    def compact(x0, x1, G):
        a(f"ds_bpermute_b32 v{G}, v6, v{x0}"); a(f"ds_bpermute_b32 v{G+2}, v6, v{x1}")
        a(f"v_mov_b32 v{G+1}, s47"); a(f"v_mov_b32 v{G+3}, s47")
        a("s_waitcnt lgkmcnt(0)")
    def quad_out(D, G):
        a(f"v_permlane32_swap_b32 v{D}, v{D+2}"); a(f"v_permlane32_swap_b32 v{D+1}, v{D+3}")
        a(f"v_add_f32_dpp v{D}, v{D+2}, v{D} row_ror:8 {DPPALL}")
        a(f"v_add_f32_dpp v{D+1}, v{D+3}, v{D+1} row_ror:8 {DPPALL}")
        compact(D, D + 1, G)
    def store32(G, soff):
        a("s_mov_b32 exec_hi, 0")
        a(f"buffer_store_dwordx4 v[{G}:{G+3}], v2, s[52:55], {soff} offen sc1")
        a("s_mov_b64 exec, -1")
    def check_tags(regs_, acc):
        for i, r in enumerate(regs_):
            if i == 0: a(f"v_xor_b32 v{acc}, s47, v{r}")
            else: a(f"v_bitop3_b32 v{acc}, v{acc}, v{r}, s47 bitop3:0xf6")
    def ppoll(name, depth, nload, issue, check, consume, gap=2, mid=None, sleep=0):
        for d in range(depth):
            issue(d)
            if d == 0 and mid: mid()
            elif d < depth - 1 and gap: a(f"s_sleep {gap}")
        a("s_mov_b32 s45, 0")
        a.label(f"L_{name}")
        for d in range(depth):
            a(f"s_waitcnt vmcnt({(depth-1)*nload})")
            check(d)
            a(f"s_cbranch_vccz L_{name}_ok{d}")
            if sleep: a(f"s_sleep {sleep}")
            issue(d)
        a("s_add_u32 s45, s45, 1")
        a(f"s_cmp_lt_u32 s45, {SPIN_MAX}")
        a(f"s_cbranch_scc1 L_{name}")
        for d in range(depth):
            a.label(f"L_{name}_ok{d}")
            if consume:
                consume(d)
                if d < depth - 1: a(f"s_branch L_{name}_done")
        a.label(f"L_{name}_done")
    def regcheck(base, n, acc=16):
        def f(d):
            b = base + 4 * n * d
            check_tags([b + 4 * k + o for k in range(n) for o in (1, 3)], acc)
            a(f"v_cmp_ne_u32 vcc, 0, v{acc}")
        return f
    def lds_spin(name, cnt_off, target, vtmp, extra=None, sleep=1):
        a("s_mov_b32 s45, 0")
        a.label(f"L_{name}")
        a(f"ds_read_b32 v{vtmp}, v1 offset:{cnt_off}")
        if extra: extra()
        a("s_add_u32 s45, s45, 1")
        a("s_waitcnt lgkmcnt(0)")
        a(f"v_readfirstlane_b32 s44, v{vtmp}")
        a(f"s_cmp_ge_u32 s44, {target}")
        a(f"s_cbranch_scc1 L_{name}_ok")
        if sleep: a(f"s_sleep {sleep}")
        a(f"s_cmp_lt_u32 s45, {SPIN_MAX * 8}")
        a(f"s_cbranch_scc1 L_{name}")
        a.label(f"L_{name}_ok")
    def lds_inc(off):
        a("s_mov_b64 exec, 1"); a(f"ds_add_u32 v1, v39 offset:{off}"); a("s_mov_b64 exec, -1")

    def w2_loads():
        srd(36, 20, 1376 * 1024); srd(40, 18, 2752)
        a("s_mul_i32 s48, s30, 48"); a("s_lshl_b32 s44, s48, 10"); a("s_lshl_b32 s45, s31, 7"); a("s_add_u32 s44, s44, s45")
        a("v_lshlrev_b32 v5, 11, v3"); a("v_lshl_add_u32 v5, v4, 4, v5"); a("v_add_u32 v5, s44, v5")
        for i in range(6):
            a(f"s_mov_b32 s44, {(i>>1)*16384}")
            a(f"buffer_load_dwordx4 v[{72+4*i}:{75+4*i}], v5, s[36:39], s44 offen offset:{(i&1)*1024}{wflags}")
        a("v_lshrrev_b32 v7, 1, v3"); a("v_lshlrev_b32 v7, 5, v7"); a("v_lshl_add_u32 v7, v4, 2, v7")
        a("v_and_b32 v36, 1, v3"); a("v_lshl_add_u32 v7, v36, 1, v7")
        a("s_lshl_b32 s44, s48, 1")
        a("buffer_load_ushort v28, v7, s[40:43], s44 offen")
    if diag:
        for k in range(1, NST): a(f"s_mov_b32 s{64+2*k}, 0")
    stamp(0)
    if pad: a("s_memrealtime s[80:81]")
    a("s_cmp_ge_u32 s2, 256"); a("s_cbranch_scc1 L_end")
    a("s_load_dwordx16 s[4:19], s[0:1], 0")
    a("s_load_dwordx8 s[20:27], s[0:1], 64")
    a("s_load_dwordx2 s[28:29], s[0:1], 96")
    a("v_lshrrev_b32 v1, 6, v0"); a("v_and_b32 v0, 63, v0")
    a("v_readfirstlane_b32 s3, v1")
    a("s_and_b32 s30, s2, 7"); a("s_lshr_b32 s31, s2, 3"); a("s_and_b32 s44, s31, 3")
    a("s_lshl2_add_u32 s30, s30, s44")
    a("s_lshr_b32 s31, s31, 2")
    a("v_mov_b32 v1, 0"); a("v_mov_b32 v39, 1")
    a("s_cmp_ge_u32 s3, 4"); a("s_cbranch_scc1 L_main")
    a("s_setprio 3")
    a("v_lshlrev_b32 v2, 4, v0"); a("v_lshrrev_b32 v3, 3, v0"); a("v_and_b32 v4, 7, v0")
    a("s_cmp_ge_u32 s3, 2"); a("s_cbranch_scc1 L_h2_par")
    a("s_lshr_b32 s48, s31, 1")
    a("s_lshl_b32 s44, s48, 20"); a("s_lshl_b32 s45, s30, 8"); a("s_add_u32 s44, s44, s45")
    a("s_and_b32 s45, s31, 1"); a("s_lshl_b32 s45, s45, 7"); a("s_add_u32 s44, s44, s45")
    a("s_lshl_b32 s45, s3, 16"); a("s_add_u32 s44, s44, s45")
    a("s_movk_i32 s50, 0x2000"); a("s_mov_b32 s51, 0x20000"); a("s_mov_b32 s38, 0x400000")
    a("s_waitcnt lgkmcnt(0)")
    a("s_mov_b64 s[36:37], s[10:11]")
    a("s_branch L_h_issue")
    a.label("L_h2_par")
    a("s_cmp_eq_u32 s3, 3"); a("s_cbranch_scc1 L_h3_par")
    a("s_mul_i32 s48, s2, 1525"); a("s_lshr_b32 s48, s48, 16")
    a("s_mul_i32 s44, s48, 43"); a("s_sub_u32 s49, s2, s44")
    a(f"s_mul_i32 s44, s48, {64*5504}"); a("s_lshl_b32 s45, s49, 7"); a("s_add_u32 s44, s44, s45")
    a("s_movk_i32 s50, 5504"); a(f"s_mov_b32 s51, {8*5504}"); a(f"s_mov_b32 s38, {512*2752}")
    a("s_waitcnt lgkmcnt(0)")
    a("s_mov_b64 s[36:37], s[16:17]")
    a.label("L_h_issue")
    a("s_load_dword s46, s[28:29], 0")
    a("s_mov_b32 s39, 0x20000")
    srd(32, 4, 1024)
    a("v_mul_u32_u24 v5, s51, v3"); a("v_lshl_add_u32 v5, v4, 4, v5")
    a("buffer_load_dwordx4 v[8:11], v2, s[32:35], 0 offen")
    for i in range(8):
        a(f"buffer_load_dwordx4 v[{40+4*i}:{43+4*i}], v5, s[36:39], s44 offen{wflags}")
        if i < 7: a("s_add_u32 s44, s44, s50")
    a.label("L_h_issued")
    a("s_barrier")
    if "nohelp" in abl: a("s_branch L_fin")
    for hh in range(4):
        if f"noh{hh}" in abl: a(f"s_cmp_eq_u32 s3, {hh}"); a("s_cbranch_scc1 L_fin")
    a("s_branch L_helper")
    a.label("L_h3_par")
    a("v_lshlrev_b32 v36, 2, v0")
    a(f"ds_write_b32 v36, v1 offset:{L_CNT}")
    a("s_lshl_b32 s44, s30, 23"); a("s_lshl_b32 s45, s31, 17"); a("s_add_u32 s44, s44, s45"); a("s_add_u32 s44, s44, 0x700000")
    a("s_lshl_b32 s45, s30, 17")
    a("s_waitcnt lgkmcnt(0)")
    a("s_load_dword s46, s[28:29], 0")
    if tlb:
        a("s_add_u32 s48, s8, s44"); a("s_addc_u32 s49, s9, 0")
        a("s_add_u32 s50, s12, s45"); a("s_addc_u32 s51, s13, 0")
        a("v_mov_b32 v12, s48"); a("v_mov_b32 v13, s49")
        for k, b in enumerate((50, 20, 18, 22, 24, 28)):
            a(f"v_writelane_b32 v12, s{b}, {k+1}"); a(f"v_writelane_b32 v13, s{b+1}, {k+1}")
        a("s_mov_b64 exec, 0x7f")
        a("global_load_dword v14, v[12:13], off")
        a("s_mov_b64 exec, -1")
    if w2first: w2_loads()
    a("s_branch L_h_issued")

    a.label("L_main")
    K0, V0 = 40, 104
    a("s_sub_u32 s62, s3, 4")
    if prio: a("s_setprio 2")
    a("s_lshl_b32 s44, s30, 23"); a("s_lshl_b32 s45, s31, 17"); a("s_add_u32 s44, s44, s45"); a("s_add_u32 s44, s44, 0x700000")
    a("s_lshr_b32 s45, s62, 2"); a("s_lshl_b32 s45, s45, 16"); a("s_add_u32 s44, s44, s45")
    a(f"s_mul_i32 s45, s2, {rotm}")
    a("s_and_b32 s61, s62, 3"); a("s_add_u32 s46, s61, s45")
    for k in range(4):
        a(f"s_add_u32 s47, s46, {4*k}"); a("s_and_b32 s47, s47, 15"); a("s_lshl_b32 s47, s47, 10")
        a(f"v_lshl_add_u32 v{2+k}, v0, 4, s47")
    a("s_lshr_b32 s46, s45, 4")
    for k in range(4):
        a(f"s_add_u32 s47, s46, {k}"); a("s_and_b32 s47, s47, 3"); a(f"s_lshl_b32 s{40+k}, s47, 14")
    a("s_cmp_ge_u32 s62, 4"); a("s_cbranch_scc1 L_y0")
    a("s_waitcnt lgkmcnt(0)")
    srd(32, 6, 0x10000, "s44")
    def load(n):
        t, i = (K0, n) if n < 16 else (V0, n - 16)
        sr = "s[32:35]" if n < 16 else "s[36:39]"
        if n == 16 and prio: a("s_setprio 1")
        if LA and n >= LA: a(f"s_waitcnt vmcnt({LA-1})")
        a(f"buffer_load_dwordx4 v[{t+4*i}:{t+4*i+3}], v{2+(i&3)}, {sr}, s{40+(i>>2)} offen{kvflags}")
    for n in range(first): load(n)
    a("s_barrier")
    a("s_branch L_y1")
    a.label("L_y0")
    if pref:
        a("s_getpc_b64 s[86:87]")
        a("s_lshl_b32 s45, s61, 7"); a("s_add_u32 s86, s86, s45"); a("s_addc_u32 s87, s87, 0")
        order = list(range(PREF_H, PREF_N)) + list(range(PREF_H))
        for k in order[:8]: a(f"s_load_dword s88, s[86:87], {512*k}")
    a("s_barrier")
    if pref:
        for k in order[8:]: a(f"s_load_dword s88, s[86:87], {512*k}")
    a("s_waitcnt lgkmcnt(0)")
    srd(32, 6, 0x10000, "s44")
    for n in range(first): load(n)
    a.label("L_y1")
    srd(36, 8, 0x10000, "s44")
    stamp(1)
    for n in range(first, 12): load(n)
    a("s_load_dword s46, s[28:29], 0")
    srd(52, 28, WS_SIZE)
    a("s_lshl_b32 s44, s30, 17"); a("s_lshl_b32 s45, s31, 7"); a("s_add_u32 s44, s44, s45")
    a("s_lshl_b32 s45, s61, 15"); a("s_add_u32 s44, s44, s45")
    srd(56, 12, 0x8000, "s44")
    a("s_and_b32 s45, s61, 1"); a("s_lshl_b32 s45, s45, 2")
    a("s_lshl_b32 s61, s61, 12"); a(f"s_add_u32 s61, s61, {L_WO}")
    a("v_lshrrev_b32 v7, 3, v0"); a("v_and_b32 v6, 2, v7"); a("v_xor_b32 v6, s45, v6")
    a("v_and_b32 v8, 7, v0"); a("v_xor_b32 v6, v6, v8"); a("v_lshlrev_b32 v6, 4, v6")
    a("v_lshl_add_u32 v6, v7, 10, v6")
    masks(28, 15, 36)
    a("v_and_b32 v7, 15, v0"); a("v_lshlrev_b32 v7, 4, v7")
    a("s_mov_b32 s48, 0xcccccccc"); a("s_mov_b32 s49, 0xcccccccc"); a("s_mov_b32 s50, 0xaaaaaaaa"); a("s_mov_b32 s51, 0xaaaaaaaa")
    issued = 12
    wo_done = False
    NWO = 4
    def issue_next(cnt=1):
        nonlocal issued, wo_done
        for _ in range(cnt):
            if issued < 32:
                load(issued); issued += 1
        if issued == 32 and not wo_done:
            wo_done = True
            if wopos is not None: return
            a("s_cmp_lt_u32 s62, 4"); a("s_cbranch_scc1 L_nowo")
            if prio: a("s_setprio 0")
            for e in range(NWO):
                a(f"s_add_u32 m0, s61, {e*1024}")
                a(f"s_mov_b32 s60, {e*8192}")
                a(f"buffer_load_dwordx4 v6, s[56:59], s60 offen{wflags} lds")
            if prio: a("s_setprio 1")
            a.label("L_nowo")
    while issued <= QKPOS and issued < 32: issue_next()
    a(f"s_waitcnt vmcnt({issued - 16})")
    stamp(2)
    lds_spin("mq", C_Q, 0 if "noq" in abl else 1, 36, extra=lambda: a(f"ds_read_b128 v[8:11], v7 offset:{L_Q}"), sleep=2)
    stamp(3)
    tag_from_epoch()
    for w in range(4):
        for i in range(16):
            a(f"v_dot2_f32_bf16 v{12+i}, v{K0+4*i+w}, v{8+w}, {'v%d' % (12+i) if w else '0'}")
        issue_next()
    for i in range(8):
        a(f"v_add_f32_dpp v{12+i}, v{12+i}, v{12+i} row_ror:8 row_mask:0xf bank_mask:0x3")
    for i in range(8):
        a(f"v_add_f32_dpp v{12+i}, v{20+i}, v{20+i} row_ror:8 row_mask:0xf bank_mask:0xc")
    issue_next()
    for i in range(4):
        a(f"v_add_f32_dpp v{12+i}, v{12+i}, v{12+i} row_half_mirror row_mask:0xf bank_mask:0x5")
    for i in range(4):
        a(f"v_add_f32_dpp v{12+i}, v{16+i}, v{16+i} row_half_mirror row_mask:0xf bank_mask:0xa")
    for i in range(4):
        a(f"v_add_f32_dpp v{12+i}, v{12+i}, v{12+i} quad_perm:[2,3,0,1] {DPPALL}")
    a("v_cndmask_b32 v12, v12, v14, s[48:49]"); a("v_cndmask_b32 v13, v13, v15, s[48:49]")
    for i in range(2):
        a(f"v_add_f32_dpp v{12+i}, v{12+i}, v{12+i} quad_perm:[1,0,3,2] {DPPALL}")
    a("v_cndmask_b32 v12, v12, v13, s[50:51]")
    issue_next()
    rnd(12); a(f"v_mul_f32 v12, {SCALE:#x}, v12"); rnd(12)
    a("v_mov_b32 v14, v12")
    wave_red("v_max_f32", 14, 13)
    issue_next()
    a("v_sub_f32 v12, v12, v14"); a(f"v_mul_f32 v12, {LOG2E:#x}, v12"); a("v_exp_f32 v12, v12")
    a("v_mov_b32 v15, v12")
    a("v_cvt_pk_bf16_f32 v16, v12, v12")
    wave_red("v_add_f32", 15, 13)
    a("s_lshl_b32 s44, s62, 3"); a("v_mov_b32 v13, s44")
    a("s_mov_b64 exec, 1")
    a(f"ds_write_b64 v13, v[14:15] offset:{L_ST}")
    a(f"ds_add_u32 v1, v39 offset:{C_ST}")
    a("s_mov_b64 exec, -1")
    issue_next(32)
    assert issued == 32 and wo_done
    for i in range(16):
        for w in range(4):
            a(f"v_and_b32_dpp v{K0+4*i+w}, v16, v{28+w} row_newbcast:{i} {DPPALL}")
    stamp(4)
    a("v_and_b32 v13, 7, v0"); a("v_lshlrev_b32 v23, 4, v13"); a("v_lshlrev_b32 v13, 3, v13")
    a("v_and_b32 v21, 15, v0"); a("v_lshlrev_b32 v20, 5, v21"); a("v_and_b32 v22, 16, v0"); a("v_add_u32 v20, v20, v22")
    a("s_lshl_b32 s44, s62, 9"); a("v_add_u32 v20, s44, v20")
    a("v_lshrrev_b32 v24, 4, v0"); a("v_lshl_add_u32 v23, v24, 7, v23")
    a("v_and_b32 v22, 8, v0"); a("v_add_u32 v22, v22, v23")
    a("s_lshl_b32 s44, s30, 3"); a("s_add_u32 s44, s44, s31"); a("s_lshl_b32 s63, s44, 9"); a(f"s_add_u32 s63, s63, {OP}")
    def pv(i, extra):
        a(f"s_waitcnt vmcnt({15 - i + extra})")
        a(f"v_mfma_f32_16x16x32_bf16 v[32:35], v[{K0+4*i}:{K0+4*i+3}], v[{V0+4*i}:{V0+4*i+3}], {'v[32:35]' if i else '0'}")
    lds_spin("mst", C_ST, 8, 18, extra=lambda: a(f"ds_read_b64 v[26:27], v13 offset:{L_ST}"), sleep=2)
    a("v_mov_b32 v9, v26"); red8("v_max_f32", 9)
    a("v_sub_f32 v19, v14, v9"); a(f"v_mul_f32 v19, {LOG2E:#x}, v19"); a("v_exp_f32 v19, v19")
    a("v_sub_f32 v26, v26, v9"); a(f"v_mul_f32 v26, {LOG2E:#x}, v26"); a("v_exp_f32 v26, v26")
    a("v_mul_f32 v10, v26, v27"); red8("v_add_f32", 10)
    a("v_cndmask_b32 v10, v9, v10, s[50:51]")
    a("v_mov_b32 v11, s47")
    a("s_cmp_ge_u32 s62, 4"); a("s_cbranch_scc1 L_pvw")
    for i in range(16): pv(i, 0)
    a("s_branch L_pvd")
    a.label("L_pvw")
    for i in range(16):
        pv(i, NWO if (wopos is None or i > wopos) else 0)
        if i == wopos:
            for e in range(NWO):
                a(f"s_add_u32 m0, s61, {e*1024}")
                a(f"s_mov_b32 s60, {e*8192}")
                a(f"buffer_load_dwordx4 v6, s[56:59], s60 offen{wflags} lds")
    a.label("L_pvd")
    a("s_nop 7")
    stamp(5)
    if "notail" in abl: a("s_branch L_fin")
    for r in range(4): a(f"v_mul_f32 v{32+r}, v{32+r}, v19")
    a("s_mov_b32 exec_hi, 0")
    a(f"ds_write_b128 v20, v[32:35] offset:{L_O}")
    a("s_mov_b64 exec, 1")
    a(f"ds_add_rtn_u32 v18, v1, v39 offset:{C_O}")
    a("s_mov_b64 exec, -1")
    a("s_waitcnt lgkmcnt(0)")
    a("v_readfirstlane_b32 s44, v18")
    a("s_cmp_eq_u32 s44, 7"); a("s_cbranch_scc0 L_noreduce")
    for w in range(8): a(f"ds_read_b64 v[{40+2*w}:{41+2*w}], v22 offset:{L_O + 512*w}")
    a("s_waitcnt lgkmcnt(0)")
    for s in (4, 2, 1):
        for w in range(s):
            a(f"v_pk_add_f32 v[{40+2*w}:{41+2*w}], v[{40+2*w}:{41+2*w}], v[{40+2*(w+s)}:{41+2*(w+s)}]")
    a("v_cvt_pk_bf16_f32 v8, v40, v41")
    a(f"v_mov_b32_dpp v9, v8 row_ror:8 {DPPALL}")
    a("s_mov_b32 exec_lo, 0x00ff00ff"); a("s_mov_b32 exec_hi, 0x00ff00ff")
    a("buffer_store_dwordx4 v[8:11], v23, s[52:55], s63 offen sc1")
    stamp(6)
    a("s_waitcnt vmcnt(1)")
    a("s_branch L_wo_landed")
    a.label("L_noreduce")
    a("s_waitcnt vmcnt(0)")
    a.label("L_wo_landed")
    a("s_mov_b64 exec, 1"); a(f"ds_add_u32 v1, v39 offset:{C_WO}")
    a("s_branch L_fin")

    a.label("L_helper")
    srd(52, 28, WS_SIZE)
    masks(32, 7, 36)
    a("v_bfe_u32 v6, v0, 2, 3"); a("v_and_b32 v36, 2, v0"); a("v_lshl_add_u32 v6, v36, 3, v6")
    a("v_and_b32 v36, 1, v0"); a("v_lshl_add_u32 v6, v36, 5, v6"); a("v_lshlrev_b32 v6, 2, v6")
    a("s_cmp_eq_u32 s3, 3"); a("s_cbranch_scc1 L_m2")
    a("s_lshl_b32 s44, s48, 8"); a("s_lshl_b32 s45, s3, 10"); a("s_add_u32 s44, s44, s45")
    a("v_lshl_add_u32 v7, v3, 5, s44")
    a("v_add_u32 v38, s45, v2")
    a("s_lshr_b32 s45, s3, 1")
    a("s_cmp_lt_u32 s2, 172"); a("s_cbranch_scc1 L_do_ln")
    a("s_cmp_eq_u32 s3, 2"); a("s_cbranch_scc1 L_m1_done")
    a.label("L_do_ln")
    a("s_waitcnt vmcnt(8)")
    stamp(1)
    a.label("L_ln")
    layernorm(12, 8, 20)
    a("s_sub_u32 s45, s45, 1"); a("s_cbranch_scc0 L_ln")
    a(f"ds_write_b128 v38, v[8:11] offset:{L_XN}")
    a("s_cmp_eq_u32 s3, 2"); a("s_cbranch_scc1 L_m1")
    a("s_lshl_b32 s44, s3, 4"); a("v_add_u32 v7, s44, v7")
    a(f"ds_read_b128 v[12:15], v7 offset:{L_XN}")
    a("s_mov_b32 s50, 0x01000100"); a("s_mov_b32 s51, 0x03020302")
    a("s_lshl_b32 s49, s30, 12"); a(f"s_add_u32 s49, s49, {QP}")
    a("s_lshl_b32 s44, s31, 9"); a("s_add_u32 s48, s49, s44")
    a("s_waitcnt lgkmcnt(0)")
    tag_from_epoch()
    stamp(2)
    for i in range(8):
        A = 20 + 4 * (i & 1)
        a(f"v_perm_b32 v28, v{12+(i>>1)}, v{12+(i>>1)}, s{50+(i&1)}")
        for w in range(4): a(f"v_and_b32 v{A+w}, v28, v{32+w}")
        a(f"s_waitcnt vmcnt({7-i})")
        a(f"v_mfma_f32_16x16x32_bf16 v[8:11], v[{A}:{A+3}], v[{40+4*i}:{43+4*i}], {'v[8:11]' if i else '0'}")
    quad_out(8, 12)
    a("s_cmp_eq_u32 s3, 0"); a("s_cbranch_scc1 L_h0")
    a(f"ds_write_b128 v2, v[12:15] offset:{L_QH}")
    lds_inc(C_QH)
    stamp(3)
    def sum4a(b):
        a(f"v_add_f32 v8, v{b}, v{b+4}"); a(f"v_add_f32 v9, v{b+2}, v{b+6}"); a(f"v_add_f32 v10, v{b+8}, v{b+12}"); a(f"v_add_f32 v11, v{b+10}, v{b+14}")
    def iss_qp(d):
        for k in range(4): a(f"buffer_load_dwordx4 v[{40+16*d+4*k}:{43+16*d+4*k}], v2, s[52:55], s49 offen offset:{1024*k} sc1")
    if "nopoll" in abl: a("s_branch L_fin")
    if qfirst: a(f"s_sleep {qfirst}")
    if "poll1" in abl:
        iss_qp(0); a("s_waitcnt vmcnt(0)"); stamp(4); a("s_branch L_fin")
    ppoll("qp", qdepth, 4, iss_qp, regcheck(40, 4), lambda d: sum4a(40 + 16 * d), gap=qgap)
    a("v_add_f32 v8, v8, v10"); a("v_add_f32 v9, v9, v11")
    a("v_cvt_pk_bf16_f32 v8, v8, v9")
    a("v_lshlrev_b32 v16, 2, v0")
    a(f"ds_write_b32 v16, v8 offset:{L_Q}")
    lds_inc(C_Q)
    stamp(4)
    a("s_branch L_gemv")
    a.label("L_h0")
    lds_spin("qh", C_QH, 1, 20, extra=lambda: a(f"ds_read_b128 v[16:19], v2 offset:{L_QH}"))
    a("v_add_f32 v12, v12, v16"); a("v_add_f32 v14, v14, v18")
    if "nostore" not in abl: store32(12, "s48")
    stamp(3)

    a.label("L_gemv")
    if "notail" in abl: a("s_branch L_fin")
    a("v_lshrrev_b32 v16, 4, v0"); a("v_bfe_u32 v17, v0, 2, 2")
    a("v_lshlrev_b32 v18, 12, v16"); a("v_lshl_add_u32 v18, v17, 7, v18")
    a("v_and_b32 v19, 3, v0"); a("v_lshl_add_u32 v18, v19, 3, v18")
    a("v_lshrrev_b32 v17, 1, v17"); a("v_and_b32 v19, 1, v16"); a("v_lshl_or_b32 v17, v19, 1, v17")
    a("s_lshl_b32 s44, s3, 1"); a("v_xor_b32 v17, s44, v17")
    a("v_lshl_add_u32 v20, v17, 5, v18"); a("v_xor_b32 v17, 1, v17"); a("v_lshl_add_u32 v21, v17, 5, v18")
    a(f"s_mul_i32 s60, s3, {opdepth*G_SET}"); a(f"s_add_u32 s60, s60, {L_G}")
    a("v_lshrrev_b32 v19, 1, v4"); a(f"v_mul_u32_u24 v34, {G_INS}, v19"); a("v_and_b32 v19, 1, v4"); a("v_lshl_add_u32 v34, v19, 9, v34")
    a("v_add_u32 v36, s60, v34")
    a("v_lshl_add_u32 v22, v16, 7, v36")
    a("v_add_u32 v37, s60, v2")
    a("s_lshl_b32 s50, s30, 12"); a(f"s_add_u32 s50, s50, {OP}")
    for k in range(4): a(f"s_add_u32 s{56+k}, s50, {1024*k}")
    a("v_and_b32 v19, 15, v0"); a("v_lshrrev_b32 v23, 5, v0"); a("v_lshl_add_u32 v23, v23, 4, v19"); a("v_lshlrev_b32 v23, 3, v23")
    a("s_lshl_b32 s48, s31, 14"); a("s_lshl_b32 s44, s30, 9"); a("s_add_u32 s48, s48, s44")
    a("s_lshl_b32 s44, s3, 8"); a("s_add_u32 s49, s48, s44"); a(f"s_add_u32 s49, s49, {TP}")
    lds_spin("go", C_O, 8, 16, sleep=2)
    B0 = 120
    def getB():
        lds_spin("wo", C_WO, 8, 16, sleep=0)
        for s in range(4):
            for t in range(2):
                for hh in range(2):
                    r = B0 + 8 * s + 4 * t + 2 * hh
                    a(f"ds_read_b64_tr_b16 v[{r}:{r+1}], v{20+t} offset:{L_WO + (8*s+4*hh)*128}")
        stamp(5)
    def iss_op(d):
        for k in range(4):
            a(f"s_add_u32 m0, s60, {d*G_SET + k*G_INS}")
            a(f"buffer_load_dwordx4 v2, s[52:55], s{56+k} offen sc1 lds")
    def chk_op(d):
        o = d * G_SET
        for k in range(4): a(f"ds_read_b32 v{100+k}, v37 offset:{o + k*G_INS + 12}")
        a(f"ds_read_b32 v8, v36 offset:{o + 8}"); a(f"ds_read_b32 v10, v36 offset:{o + 24}")
        for s in range(4):
            a(f"ds_read_b64 v[{104+4*s}:{105+4*s}], v22 offset:{o + 32*s}"); a(f"ds_read_b64 v[{106+4*s}:{107+4*s}], v22 offset:{o + 32*s + 16}")
        a("s_waitcnt lgkmcnt(10)")
        check_tags([100, 101, 102, 103], 16)
        a("v_cmp_ne_u32 vcc, 0, v16")
        a("s_waitcnt lgkmcnt(0)")
    if opfirst:
        getB()
        ppoll("op", opdepth, 4, iss_op, chk_op, None, gap=opgap)
    else:
        ppoll("op", opdepth, 4, iss_op, chk_op, None, gap=opgap, mid=getB)
    stamp(6)
    a("v_mov_b32 v9, v8")
    for s in range(4):
        for t in range(2):
            r = B0 + 8 * s + 4 * t
            a(f"v_mfma_f32_16x16x32_bf16 v[{24+4*t}:{27+4*t}], v[{104+4*s}:{107+4*s}], v[{r}:{r+3}], {'v[%d:%d]' % (24+4*t, 27+4*t) if s else '0'}")
        if s == 0: red8("v_max_f32", 9)
        if s == 1: a("v_sub_f32 v8, v8, v9"); a(f"v_mul_f32 v8, {LOG2E:#x}, v8"); a("v_exp_f32 v8, v8")
        if s == 2: a("v_mul_f32 v10, v8, v10"); red8("v_add_f32", 10)
    for r in range(4):
        a(f"v_mov_b32_dpp v{32+r}, v8 row_newbcast:{r} row_mask:0x5 bank_mask:0xf")
    for r in range(4):
        a(f"v_mov_b32_dpp v{32+r}, v8 row_newbcast:{4+r} row_mask:0xa bank_mask:0xf")
    a("v_rcp_f32 v10, v10")
    for r in range(4):
        a(f"v_mov_b32_dpp v{24+r}, v{28+r} quad_perm:[0,1,2,3] row_mask:0xc bank_mask:0xf")
    a("v_mul_f32 v24, v24, v32"); a("v_mul_f32 v26, v26, v34")
    a("v_fmac_f32 v24, v25, v33"); a("v_fmac_f32 v26, v27, v35")
    a("v_add_f32 v24, v24, v26")
    a("v_mov_b32 v28, v24"); a("v_permlane16_swap_b32 v24, v28"); a("v_add_f32 v12, v24, v28")
    a("v_mul_f32 v12, v12, v10")
    a("s_mov_b32 exec_lo, 0xffff"); a("s_mov_b32 exec_hi, 0xffff")
    a("buffer_store_dwordx2 v[12:13], v23, s[52:55], s49 offen sc1")
    stamp(7)
    a("s_branch L_fin")

    a.label("L_m1")
    a(f"ds_read_b128 v[12:15], v7 offset:{L_XN}"); a(f"ds_read_b128 v[16:19], v7 offset:{L_XN+16}")
    a("s_lshl_b32 s44, s49, 6"); a("v_lshl_add_u32 v36, v4, 3, s44")
    a("v_mov_b32 v37, 16"); a("v_cmp_lt_u32 vcc, 1375, v36"); a("v_cndmask_b32 v37, 0, v37, vcc")
    a(f"s_mul_i32 s50, s48, {2752*8}"); a("s_lshl_b32 s44, s49, 9"); a("s_add_u32 s50, s50, s44"); a(f"s_add_u32 s50, s50, {HP}")
    a("s_waitcnt lgkmcnt(0)")
    tag_from_epoch()
    for i in range(8):
        a(f"v_lshrrev_b32 v{12+i}, v37, v{12+i}")
        a(f"v_lshlrev_b32 v{72+i}, 16, v{12+i}")
        a(f"v_and_b32 v{12+i}, 0xffff, v{12+i}")
    a("s_waitcnt vmcnt(0)")
    for i in range(8):
        for k in range(8):
            y = (72 if k & 1 else 12) + i
            a(f"v_dot2_f32_bf16 v{20+k}, v{40+4*i+(k>>1)}, v{y}, {'v%d' % (20+k) if i else '0'}")
    for k in (0, 1, 4, 5): a(f"v_permlane32_swap_b32 v{20+k}, v{22+k}")
    for k in (0, 1, 4, 5): a(f"v_add_f32 v{20+k}, v{20+k}, v{22+k}")
    for k in (0, 1): a(f"v_permlane16_swap_b32 v{20+k}, v{24+k}")
    for k in (0, 1): a(f"v_add_f32 v{20+k}, v{20+k}, v{24+k}")
    a(f"v_add_f32_dpp v20, v20, v20 row_ror:8 {DPPALL}"); a(f"v_add_f32_dpp v21, v21, v21 row_ror:8 {DPPALL}")
    compact(20, 21, 12)
    store32(12, "s50")
    a.label("L_m1_done")
    stamp(2)
    if "notail" in abl: a("s_branch L_fin")
    a("s_and_b32 s44, s30, 7"); a("s_cmp_lg_u32 s44, 0"); a("s_cbranch_scc1 L_fin")
    srd(32, 4, 1024); srd(36, 22, 1024); srd(40, 24, 1024)
    a("s_lshl_b32 s48, s31, 14"); a("s_lshl_b32 s44, s30, 4"); a("s_add_u32 s48, s48, s44")
    a("s_lshl_b32 s44, s31, 7"); a("s_lshl_b32 s45, s30, 2"); a("s_add_u32 s44, s44, s45")
    a("v_bfe_u32 v5, v0, 4, 1"); a("v_lshlrev_b32 v5, 1, v5"); a("v_lshl_add_u32 v5, v4, 2, v5"); a("v_add_u32 v5, s44, v5")
    a("buffer_load_ushort v36, v5, s[32:35], 0 offen")
    a("buffer_load_ushort v37, v5, s[36:39], 0 offen")
    a("v_lshlrev_b32 v7, 9, v3"); a("v_lshl_add_u32 v7, v4, 4, v7")
    for k in range(4): a(f"s_add_u32 s{56+k}, s48, {MP + 4096*k}")
    a("s_waitcnt vmcnt(0) lgkmcnt(0)")
    tag_from_epoch()
    a("v_mov_b32 v52, 0"); a("v_mov_b32 v53, s47"); a("v_mov_b32 v54, 0"); a("v_mov_b32 v55, s47")
    lds_spin("fw", C_WO, 8, 18, sleep=2)
    def iss4(b, masked):
        for k in range(4):
            if masked and k == 3: a("s_mov_b32 exec_hi, 0xff")
            a(f"buffer_load_dwordx4 v[{b+4*k}:{b+3+4*k}], v7, s[52:55], s{56+k} offen sc1")
        if masked: a("s_mov_b64 exec, -1")
    def sum4b(dst):
        a("v_add_f32 v8, v8, v10"); a("v_add_f32 v9, v9, v11")
        a(f"v_add_f32_dpp v8, v8, v8 row_ror:8 {DPPALL}"); a(f"v_add_f32_dpp v9, v9, v9 row_ror:8 {DPPALL}")
        a("v_permlane16_swap_b32 v8, v9"); a("v_add_f32 v8, v8, v9")
        a("v_mov_b32 v9, v8"); a("v_permlane32_swap_b32 v8, v9"); a(f"v_add_f32 v{dst}, v8, v9")
    ppoll("mp", 1, 4, lambda d: iss4(40, True), regcheck(40, 4), None)
    for k in range(4): a(f"s_add_u32 s{56+k}, s48, {TP + 4096*k}")
    def gate():
        sum4a(40); sum4b(38); rnd(38)
        a("v_lshlrev_b32 v37, 16, v37"); a("v_add_f32 v38, v38, v37"); rnd(38)
        a(f"v_mul_f32 v17, {LOG2E | 0x80000000:#x}, v38"); a("v_exp_f32 v17, v17"); a("v_add_f32 v17, 1.0, v17"); a("v_rcp_f32 v17, v17")
        a("v_mul_f32 v38, v38, v17"); rnd(38)
        a("v_lshlrev_b32 v36, 16, v36")
        stamp(3)
    ppoll("tp", tpdepth, 4, lambda d: iss4(56 + 16 * d, False), regcheck(56, 4), lambda d: sum4a(56 + 16 * d), gap=2, mid=gate)
    stamp(4)
    sum4b(8); rnd(8)
    a("v_mul_f32 v8, v8, v38"); rnd(8)
    a("v_add_f32 v8, v8, v36"); a("v_cvt_pk_bf16_f32 v8, v8, v8")
    a("s_mov_b64 exec, 0x00ff00ff")
    a("buffer_store_short v8, v5, s[40:43], 0 offen")
    stamp(5)
    a("s_cmp_lg_u32 s2, 0"); a("s_cbranch_scc1 L_fin")
    a("s_add_u32 s46, s46, 1"); a("v_mov_b32 v8, s46")
    a("s_mov_b64 exec, 1")
    a("buffer_store_dword v8, v1, s[52:55], 0 offen sc1")
    if pad:
        a.label("L_pad")
        a("s_memrealtime s[82:83]"); a("s_waitcnt lgkmcnt(0)"); a("s_sub_u32 s84, s82, s80")
        a(f"s_cmp_lt_u32 s84, {pad}"); a("s_cbranch_scc1 L_pad")
    a("s_branch L_fin")

    a.label("L_m2")
    a("s_cmp_ge_u32 s30, 29"); a("s_cbranch_scc1 L_fin")
    if not w2first: w2_loads()
    a("v_mul_u32_u24 v7, 11008, v3"); a("v_lshl_add_u32 v7, v4, 4, v7")
    a("s_lshl_b32 s49, s48, 3"); a(f"s_add_u32 s49, s49, {HP}")
    a("s_cmp_eq_u32 s30, 28"); a("s_cselect_b32 s50, 1, 2"); a("s_lshl_b32 s50, s50, 7"); a("s_add_u32 s50, s50, s49")
    lds_spin("m2q", C_Q, 0 if "noq" in abl else 1, 16, sleep=4)
    tag_from_epoch()
    def iss_hp(d):
        a("buffer_load_dwordx4 v[40:43], v7, s[52:55], s49 offen sc1")
        a("buffer_load_dwordx4 v[44:47], v7, s[52:55], s49 offen offset:128 sc1")
        a("buffer_load_dwordx4 v[48:51], v7, s[52:55], s50 offen sc1")
    if "nohp" in abl: a("s_branch L_fin")
    ppoll("hp", 1, 3, iss_hp, regcheck(40, 3), None, sleep=4)
    stamp(1)
    a("v_mov_b32 v52, v44"); a("v_mov_b32 v54, v46")
    for x, y in ((40, 48), (42, 50), (44, 52), (46, 54)): a(f"v_permlane32_swap_b32 v{x}, v{y}")
    for x, y in ((40, 48), (42, 50), (44, 52), (46, 54)): a(f"v_add_f32 v{x}, v{x}, v{y}")
    for x, y in ((40, 44), (42, 46)): a(f"v_permlane16_swap_b32 v{x}, v{y}")
    for x, y in ((40, 44), (42, 46)): a(f"v_add_f32 v{x}, v{x}, v{y}")
    a("v_add_f32_dpp v40, v40, v40 row_ror:8 row_mask:0xf bank_mask:0x3")
    a("v_add_f32_dpp v40, v42, v42 row_ror:8 row_mask:0xf bank_mask:0xc")
    rnd(40); a("v_lshlrev_b32 v28, 16, v28"); a("v_add_f32 v40, v40, v28"); rnd(40)
    a("v_mul_f32 v17, v40, v40"); a("v_mul_f32 v17, v17, v40")
    a("v_mul_f32 v17, 0x3d372713, v17"); a("v_add_f32 v17, v17, v40")
    a("v_mul_f32 v17, 0xc0135761, v17")
    a("v_exp_f32 v17, v17"); a("v_add_f32 v17, 1.0, v17"); a("v_rcp_f32 v17, v17")
    a("v_mul_f32 v40, v40, v17")
    a("v_cvt_pk_bf16_f32 v40, v40, v40")
    a("v_lshlrev_b32 v7, 2, v3")
    for i in range(6): a(f"ds_bpermute_b32 v{44+i}, v7, v40 offset:{32*i}")
    a("s_waitcnt lgkmcnt(0)")
    for i in range(6):
        A = 20 + 4 * (i & 1)
        for w in range(4): a(f"v_and_b32 v{A+w}, v{44+i}, v{32+w}")
        a(f"v_mfma_f32_16x16x32_bf16 v[8:11], v[{A}:{A+3}], v[{72+4*i}:{75+4*i}], {'v[8:11]' if i else '0'}")
    quad_out(8, 12)
    stamp(2)
    if "notail" in abl: a("s_branch L_fin")
    a("s_lshl_b32 s48, s31, 14"); a("s_lshl_b32 s44, s30, 9"); a("s_add_u32 s48, s48, s44"); a(f"s_add_u32 s48, s48, {MP}")
    lds_spin("m2o", C_O, MPWAIT, 16, sleep=2)
    store32(12, "s48")
    stamp(3)
    a.label("L_fin")
    if diag:
        a("s_waitcnt lgkmcnt(0) vmcnt(0)")
        a("s_mov_b64 exec, 1")
        a("s_add_u32 s28, s28, 0x20000000"); a("s_addc_u32 s29, s29, 0"); a("s_mov_b32 s30, 0x100000"); a("s_mov_b32 s31, 0x20000")
        a("s_mul_i32 s44, s2, 12"); a("s_add_u32 s44, s44, s3"); a("s_lshl_b32 s44, s44, 6")
        for k in range(NST): a(f"v_mov_b32 v{8+k}, s{64+2*k}")
        a("buffer_store_dwordx4 v[8:11], v1, s[28:31], s44 offen")
        a("buffer_store_dwordx4 v[12:15], v1, s[28:31], s44 offen offset:16")
    a.label("L_end")
    a("s_endpgm")
    a("s_nop 0\n" * 0)
    txt = fix(a.text()) + "\n    .fill 320, 4, 0xbf810000\n"
    return wrap(txt, 256, 768, LDS_SIZE, vgpr=168, sgpr=96)

if __name__ == "__main__":
    import json
    json.dump({"nh": 4,
     "main": ["start", "first issued", "at q wait", "q read", "A built", "last PV", "reduce pub", "-"],
     "H0": ["start", "x landed", "LN done", "QP published", "-", "B read", "OP gathered", "TP published"],
     "H1": ["start", "x landed", "LN done", "handed", "q ready", "B read", "OP gathered", "TP published"],
     "H2": ["start", "x landed", "M1 done", "g ready", "TP gathered", "out stored", "-", "-"],
     "H3": ["start", "HP gathered", "MP ready", "MP published", "-", "-", "-", "-"]}, open("dev/names5.json", "w"))
    open("dev/k5.s", "w").write(gen())
    open("dev/k5d.s", "w").write(gen(diag=True))
    for kv in sys.argv[1:]:
        name, args = kv.split("=", 1)
        open(f"dev/k5_{name}.s", "w").write(eval(f"gen({args})"))
```
